```python
import torch

def _softmax(x, axis=-1):
    return torch.softmax(x, dim=axis)
def _gelu(x):
    return torch.nn.functional.gelu(x, approximate="tanh")
def _silu(x):
    return torch.nn.functional.silu(x)
def _sigmoid(x):
    return torch.sigmoid(x)
def _layernorm(x, axis=-1, eps=1e-5):
    m = x.mean(dim=axis, keepdim=True)
    v = x.var(dim=axis, keepdim=True, unbiased=False)
    return (x - m) / torch.sqrt(v + eps)
def _scatter_add(tgt, idx, src, axis=0):
    return tgt.clone().index_add_(axis, idx, src)
def _segment_sum(src, seg, n):
    out = torch.zeros((n,) + src.shape[1:], dtype=src.dtype)
    return out.index_add_(0, seg, src)
def _pad(x, pw):
    flat = tuple(v for pair in reversed(pw) for v in pair)
    return torch.nn.functional.pad(x, flat)

kernel_name = 'recurrent_scan__ssm_conv_h3__dense_activation_gelu__prompt'

def setup_inputs():

    _w = (lambda a: (lambda t: t.to(torch.bfloat16) if t.is_floating_point() else t)(torch.as_tensor(a)))
    def _A_setup():
        B, S, D = 1, 2048, 640
        ks = 4
        return {
            "q": _w((lambda *s: torch.randn(*s, dtype=torch.bfloat16) * 0.05)(B, S, D)),
            "k": _w((lambda *s: torch.randn(*s, dtype=torch.bfloat16) * 0.8)(B, S, D)),
            "v": _w((lambda *s: torch.randn(*s, dtype=torch.bfloat16) * 0.8)(B, S, D)),
            "shift_k": _w((lambda *s: torch.randn(*s, dtype=torch.bfloat16) * 0.8)(D, ks) * 0.5),
            "ssm_k": _w((lambda *s: torch.randn(*s, dtype=torch.bfloat16) * 0.8)(D, S) * (1.0 / S ** 0.5)),
            "ssm_D": _w((lambda *s: torch.randn(*s, dtype=torch.bfloat16) * 0.8)(D)),
        }
    _A_in = _A_setup()

    def _B_setup():
        B, S, D, F = 1, 2048, 640, 1728
        return {
            "x": _w((lambda *s: torch.randn(*s, dtype=torch.bfloat16) * 0.05)(B, S, D)),
            "w1": _w((lambda *s: torch.randn(*s, dtype=torch.bfloat16) * 0.2)(D, F) * (D ** -0.5)),
            "b1": _w((lambda *s: torch.randn(*s, dtype=torch.bfloat16) * 0.2)(F) * 0.01),
            "w2": _w((lambda *s: torch.randn(*s, dtype=torch.bfloat16) * 0.2)(F, D) * (F ** -0.5)),
            "b2": _w((lambda *s: torch.randn(*s, dtype=torch.bfloat16) * 0.2)(D) * 0.01),
        }
    _B_in = _B_setup()

    return {
        "A_q": _A_in["q"],
        "A_k": _A_in["k"],
        "A_v": _A_in["v"],
        "A_shift_k": _A_in["shift_k"],
        "A_ssm_k": _A_in["ssm_k"],
        "A_ssm_D": _A_in["ssm_D"],
        "B_x": _B_in["x"],
        "B_w1": _B_in["w1"],
        "B_b1": _B_in["b1"],
        "B_w2": _B_in["w2"],
        "B_b2": _B_in["b2"],
    }

def reference(A_q, A_k, A_v, A_shift_k, A_ssm_k, A_ssm_D, B_x, B_w1, B_b1, B_w2, B_b2):
    def _A_ref(q, k, v, shift_k, ssm_k, ssm_D):
        B, S, D = q.shape
        ks = shift_k.shape[-1]
        k_pad = _pad(k, ((0, 0), (ks - 1, 0), (0, 0)))
        k_shift = torch.zeros_like(k)
        for t in range(ks):
            k_shift = k_shift + k_pad[:, t:t + S, :] * shift_k[:, ks - 1 - t][None, None, :]
        kv = k_shift * v
        L = 2 * S
        kv_pad = _pad(kv, ((0, 0), (0, S), (0, 0)))
        kf_pad = _pad(ssm_k, ((0, 0), (0, S)))
        kv_f = (lambda x, axes=(-2,-1): torch.fft.rfft2(x.float(), dim=axes))(kv_pad[:, None, :, :], axes=(1, 2))
        kf_f = (lambda x, axes=(-2,-1): torch.fft.rfft2(x.float(), dim=axes))(kf_pad[:, None, :], axes=(1, 2))
        kf_f = (lambda x, *d: x.permute(*d))(kf_f, 1, 2, 0)
        y_f = kv_f * kf_f[None, :, :, :]
        y = (lambda x, s, axes=(-2,-1): torch.fft.irfft2(x, s=s, dim=axes).to(torch.bfloat16))(y_f, (1, L), axes=(1, 2))[:, 0, :S, :]
        y = y + kv * ssm_D[None, None, :]
        return q * y

    def _B_ref(x, w1, b1, w2, b2):
        h = torch.einsum("bsd,df->bsf", x, w1) + b1
        h = _gelu(h)
        return torch.einsum("bsf,fd->bsd", h, w2) + b2

    x = A_q
    xn = _layernorm(x, axis=-1)
    s = _A_ref(xn, A_k, A_v, A_shift_k, A_ssm_k, A_ssm_D)
    g = _silu(_B_ref(xn, B_w1, B_b1, B_w2, B_b2))
    return x + s * g
```

```python
import sys

NAME = "recurrent_scan__ssm_conv_h3__dense_activation_gelu__prompt"
S, D, F = 2048, 640, 1728

WS_FLAGS = 0x000000
WS_STAT16 = 0x010000
WS_STATF = 0x018000
WS_CS16 = 0x020000
WS_XR = 0x100000
WS_Y2 = 0x400000
WS_W2F = 0x700000
WS_HF = 0xA00000
WS_USED = 0x1100000

S_WG, S_XCD, S_SLOT, S_WAVE = 2, 3, 4, 5
SRD_X, SRD_K, SRD_V, SRD_W1, SRD_WS, SRD_OUT, SRD_T0, SRD_T1 = 8, 12, 16, 20, 24, 28, 32, 36
P_Q, P_K, P_V, P_SHK, P_SSMK, P_SSMD, P_BX, P_W1 = 40, 42, 44, 46, 48, 50, 52, 54
P_B1, P_W2, P_B2, P_OUT, P_DBG, P_WS = 56, 58, 60, 62, 64, 66


def srd(n):
    return f"s[{n}:{n+3}]"


def vr(a, n=1):
    return f"v{a}" if n == 1 else f"v[{a}:{a+n-1}]"


def ar(a, n=1):
    return f"a{a}" if n == 1 else f"a[{a}:{a+n-1}]"


class Emit:
    def __init__(self):
        self.L = []
        self.n = 0

    def __call__(self, t):
        for x in t.strip("\n").split("\n"):
            x = x.strip()
            if x:
                self.L.append(x)

    def lab(self, base):
        self.n += 1
        return f"L_{base}_{self.n}"

    def text(self):
        return "\n".join(self.L) + "\n"


def mk_srd(e, dst, ptr, size):
    e(f"""s_mov_b32 s{dst}, s{ptr}
          s_and_b32 s{dst+1}, s{ptr+1}, 0xffff
          s_mov_b32 s{dst+2}, {size}
          s_mov_b32 s{dst+3}, 0x20000""")


def prologue(e, endlab):
    e(f"""s_cmp_ge_u32 s2, 256
          s_cbranch_scc1 {endlab}
          s_load_dwordx16 s[40:55], s[0:1], 0
          s_load_dwordx8 s[56:63], s[0:1], 64
          s_load_dwordx4 s[64:67], s[0:1], 96
          s_and_b32 s{S_XCD}, s2, 7
          s_lshr_b32 s{S_SLOT}, s2, 3
          v_lshrrev_b32 v1, 6, v0
          v_and_b32 v0, 0xff, v0
          s_nop 0
          v_readfirstlane_b32 s{S_WAVE}, v1
          v_and_b32 v1, 63, v0
          s_waitcnt lgkmcnt(0)""")
    mk_srd(e, SRD_X, P_Q, S * D * 2)
    mk_srd(e, SRD_K, P_K, S * D * 2)
    mk_srd(e, SRD_V, P_V, S * D * 2)
    mk_srd(e, SRD_W1, P_W1, D * F * 2)
    mk_srd(e, SRD_WS, P_WS, WS_USED)
    mk_srd(e, SRD_OUT, P_OUT, S * D * 2)


def phase_p0(e, lds0):
    K, V, SK, T = 8, 36, 52, 68
    KF, VF, R = 100, 114, 122
    mk_srd(e, SRD_T0, P_SHK, D * 4 * 2)
    e(f"""s_lshr_b32 s6, s{S_SLOT}, 3
          s_lshl_b32 s7, s{S_XCD}, 2
          s_add_u32 s68, s6, s7
          s_and_b32 s69, s{S_SLOT}, 7
          v_mul_u32_u24 v2, 26, v1
          v_lshrrev_b32 v2, 8, v2
          v_mul_u32_u24 v3, 10, v2
          v_sub_u32 v3, v1, v3
          s_lshl_b32 s6, s68, 6
          s_lshl_b32 s7, s{S_WAVE}, 4
          s_add_u32 s6, s6, s7
          s_mul_i32 s6, s6, 1280
          s_mul_i32 s7, s69, 160
          s_add_u32 s6, s6, s7
          v_mul_u32_u24 v4, 5120, v2
          v_lshl_add_u32 v4, v3, 4, v4
          v_add_u32 v4, s6, v4
          v_subrev_u32 v5, 3840, v4
          s_mul_i32 s7, s69, 640
          v_lshlrev_b32 v6, 6, v3
          v_add_u32 v6, s7, v6
          s_mov_b32 exec_lo, -1
          s_mov_b32 exec_hi, 0xff""")
    for r in range(3):
        e(f"buffer_load_dwordx4 {vr(K+4*r,4)}, v5, {srd(SRD_K)}, 0 offen offset:{1280*r}")
    for r in range(4):
        e(f"buffer_load_dwordx4 {vr(K+12+4*r,4)}, v4, {srd(SRD_K)}, 0 offen offset:{1280*r}")
    for r in range(4):
        e(f"buffer_load_dwordx4 {vr(SK+4*r,4)}, v6, {srd(SRD_T0)}, 0 offen offset:{16*r}")
    for r in range(4):
        e(f"buffer_load_dwordx4 {vr(V+4*r,4)}, v4, {srd(SRD_V)}, 0 offen offset:{1280*r}")
    e(f"""s_lshl_b32 s7, s{S_WAVE}, 5
          s_sub_u32 s7, {lds0 + 120}, s7
          v_mul_u32_u24 v7, 1152, v3
          v_lshlrev_b32 v2, 3, v2
          v_sub_u32 v7, v7, v2
          v_add_u32 v7, s7, v7
          s_waitcnt vmcnt(4)""")
    for j in range(4):
        for tap in range(4):
            for h in range(2):
                src = SK + 4 * j + 2 * h + (tap >> 1)
                dst = T + (tap * 4 + j) * 2 + h
                if tap & 1:
                    e(f"v_and_b32 v{dst}, 0xffff0000, v{src}")
                else:
                    e(f"v_lshlrev_b32 v{dst}, 16, v{src}")
    e("s_waitcnt vmcnt(0)")
    for j in range(4):
        for r in range(7):
            e(f"v_lshlrev_b32 v{KF+2*r}, 16, v{K+4*r+j}")
            e(f"v_and_b32 v{KF+2*r+1}, 0xffff0000, v{K+4*r+j}")
        for r in range(4):
            e(f"v_lshlrev_b32 v{VF+2*r}, 16, v{V+4*r+j}")
            e(f"v_and_b32 v{VF+2*r+1}, 0xffff0000, v{V+4*r+j}")
        for i in range(4):
            e(f"v_pk_mul_f32 {vr(R+2*i,2)}, {vr(KF+2*(i+3),2)}, {vr(T+(0*4+j)*2,2)}")
        for tap in range(1, 4):
            for i in range(4):
                e(f"v_pk_fma_f32 {vr(R+2*i,2)}, {vr(KF+2*(i+3-tap),2)}, {vr(T+(tap*4+j)*2,2)}, {vr(R+2*i,2)}")
        for i in range(4):
            e(f"v_pk_mul_f32 {vr(R+2*i,2)}, {vr(R+2*i,2)}, {vr(VF+2*i,2)}")
        for h in range(2):
            e(f"v_cvt_pk_bf16_f32 v{KF+2*h}, v{R+6+h}, v{R+4+h}")
            e(f"v_cvt_pk_bf16_f32 v{KF+2*h+1}, v{R+2+h}, v{R+h}")
            e(f"ds_write_b64 v7, {vr(KF+2*h,2)} offset:{(2*j+h)*144}")
    e(f"""s_mov_b64 exec, -1
          v_lshrrev_b32 v2, 3, v0
          v_and_b32 v3, 7, v0
          v_lshlrev_b32 v3, 4, v3
          v_mul_u32_u24 v4, 144, v2
          v_add_u32 v4, v4, v3
          v_add_u32 v4, {lds0}, v4
          v_lshl_add_u32 v5, v2, 12, v3
          s_mul_i32 s6, s69, {80*4096}
          s_lshl_b32 s7, s68, 7
          s_sub_u32 s6, s6, s7
          s_add_u32 s70, s6, {WS_XR + 1984*2}
          s_add_u32 s71, s70, {32*4096}
          s_add_u32 s72, s70, {64*4096}
          s_waitcnt lgkmcnt(0)
          s_barrier
          ds_read_b128 v[8:11], v4
          ds_read_b128 v[12:15], v4 offset:4608
          s_waitcnt lgkmcnt(1)
          buffer_store_dwordx4 v[8:11], v5, {srd(SRD_WS)}, s70 offen sc1
          s_waitcnt lgkmcnt(0)
          buffer_store_dwordx4 v[12:15], v5, {srd(SRD_WS)}, s71 offen sc1""")
    sk = e.lab("p0skip")
    e(f"""s_cmp_ge_u32 s{S_WAVE}, 2
          s_cbranch_scc1 {sk}
          ds_read_b128 v[16:19], v4 offset:9216
          s_waitcnt lgkmcnt(0)
          buffer_store_dwordx4 v[16:19], v5, {srd(SRD_WS)}, s72 offen sc1
          {sk}:""")


def fix_add3(e):
    pass


def phase_stats(e):
    X = 8
    e(f"""s_lshl_b32 s6, s73, 6
          s_lshl_b32 s7, s{S_WAVE}, 4
          s_add_u32 s74, s6, s7
          v_and_b32 v2, 15, v1
          v_lshrrev_b32 v3, 4, v1
          v_add_u32 v4, s74, v2
          v_mul_u32_u24 v4, 1280, v4
          v_lshl_add_u32 v4, v3, 4, v4""")
    for t in range(20):
        e(f"buffer_load_dwordx4 {vr(X+4*t,4)}, v4, {srd(SRD_X)}, 0 offen offset:{64*t}")
    e("v_mov_b32 v88, 0x3f803f80\nv_mov_b32 v89, 0x3f803f80\nv_mov_b32 v90, 0x3f803f80\nv_mov_b32 v91, 0x3f803f80")
    for i in range(8):
        e(f"v_mov_b32 v{92+i}, 0")
    for t in range(20):
        e(f"s_waitcnt vmcnt({19-t})")
        e(f"v_mfma_f32_16x16x32_bf16 v[92:95], {vr(X+4*t,4)}, {vr(X+4*t,4)}, v[92:95]")
        e(f"v_mfma_f32_16x16x32_bf16 v[96:99], {vr(X+4*t,4)}, v[88:91], v[96:99]")
    e(f"""v_and_b32 v5, 1, v1
          v_cmp_eq_u32 vcc, 1, v5
          v_and_b32 v5, 2, v1
          v_cmp_eq_u32 s[6:7], 2, v5
          s_nop 7
          v_cndmask_b32 v8, v92, v93, vcc
          v_cndmask_b32 v9, v94, v95, vcc
          v_cndmask_b32 v10, v96, v97, vcc
          v_cndmask_b32 v11, v98, v99, vcc
          v_cndmask_b32 v8, v8, v9, s[6:7]
          v_cndmask_b32 v9, v10, v11, s[6:7]
          v_mul_f32 v12, {1.0/640.0!r}, v9
          v_mul_f32 v8, {1.0/640.0!r}, v8
          v_fma_f32 v8, -v12, v12, v8
          v_max_f32 v8, 0, v8
          v_add_f32 v8, 0x3727c5ac, v8
          v_sqrt_f32 v14, v8
          s_nop 0
          v_rcp_f32 v13, v14
          v_mov_b32 v15, 0
          v_sub_f32 v16, 0, v12
          v_cvt_pk_bf16_f32 v17, v14, v16
          v_lshlrev_b32 v18, 16, v17
          v_and_b32 v19, 0xffff0000, v17
          v_sub_f32 v18, v14, v18
          v_sub_f32 v19, v16, v19
          v_cvt_pk_bf16_f32 v18, v18, v19
          s_mov_b32 s6, 0x05040100
          s_mov_b32 s7, 0x07060302
          v_perm_b32 v20, v18, v17, s6
          v_perm_b32 v21, v18, v17, s7
          v_mov_b32 v22, v21
          v_mov_b32 v23, 0
          v_and_b32 v5, 3, v1
          v_lshl_add_u32 v5, v3, 2, v5
          v_add_u32 v5, s74, v5
          v_lshlrev_b32 v5, 4, v5
          s_mov_b32 s6, {WS_STAT16}
          s_mov_b32 s7, {WS_STATF}
          s_mov_b32 exec_lo, 0x00f0000f
          s_mov_b32 exec_hi, 0xf0000f00
          buffer_store_dwordx4 v[20:23], v5, {srd(SRD_WS)}, s6 offen sc1
          buffer_store_dwordx4 v[12:15], v5, {srd(SRD_WS)}, s7 offen sc1
          s_mov_b64 exec, -1""")


def phase_colsum(e, lds0):
    X, ACC = 8, 88
    mk_srd(e, SRD_T0, P_B1, F * 2)
    e(f"""v_lshrrev_b32 v2, 3, v0
          v_and_b32 v3, 7, v0
          v_mul_u32_u24 v4, 3456, v2
          v_lshl_add_u32 v4, v3, 4, v4
          s_lshl_b32 s6, s73, 7""")
    for i in range(20):
        e(f"buffer_load_dwordx4 {vr(X+4*i,4)}, v4, {srd(SRD_W1)}, s6 offen")
        if i < 19:
            e(f"s_add_u32 s6, s6, {32*3456}")
    e(f"""s_lshl_b32 s7, s73, 7
          v_lshlrev_b32 v5, 1, v1
          buffer_load_ushort v6, v5, {srd(SRD_T0)}, s7 offen""")
    for i in range(8):
        e(f"v_mov_b32 v{ACC+i}, 0")
    for i in range(20):
        e(f"s_waitcnt vmcnt({20-i})")
        for j in range(4):
            e(f"v_lshlrev_b32 v100, 16, v{X+4*i+j}")
            e(f"v_and_b32 v101, 0xffff0000, v{X+4*i+j}")
            e(f"v_pk_add_f32 {vr(ACC+2*j,2)}, {vr(ACC+2*j,2)}, v[100:101]")
    sk = e.lab("csskip")
    e(f"""v_lshlrev_b32 v4, 8, v2
          v_lshl_add_u32 v4, v3, 5, v4
          v_add_u32 v4, {lds0}, v4
          ds_write_b128 v4, {vr(ACC,4)}
          ds_write_b128 v4, {vr(ACC+4,4)} offset:16
          s_waitcnt lgkmcnt(0)
          s_barrier
          s_cmp_lg_u32 s{S_WAVE}, 0
          s_cbranch_scc1 {sk}
          v_lshlrev_b32 v4, 2, v1
          v_add_u32 v4, {lds0}, v4""")
    for i in range(32):
        e(f"ds_read_b32 v{X+i}, v4 offset:{256*i}")
    e("s_waitcnt lgkmcnt(0)")
    for st in (16, 8, 4, 2, 1):
        for i in range(st):
            e(f"v_add_f32 v{X+i}, v{X+i}, v{X+i+st}")
    e(f"""s_waitcnt vmcnt(0)
          v_cvt_pk_bf16_f32 v9, v8, v8
          v_lshlrev_b32 v10, 16, v9
          v_sub_f32 v10, v8, v10
          v_cvt_pk_bf16_f32 v10, v10, v10
          v_lshl_or_b32 v8, v6, 16, v6
          v_mov_b32 v11, 0
          s_lshl_b32 s6, s73, 10
          s_add_u32 s6, s6, {WS_CS16}
          v_lshlrev_b32 v4, 4, v1
          buffer_store_dwordx4 v[8:11], v4, {srd(SRD_WS)}, s6 offen sc1
          {sk}:""")


def phase_w2f(e, lds0):
    mk_srd(e, SRD_T0, P_W2, F * D * 2)
    e(f"""v_lshrrev_b32 v2, 4, v1
          v_and_b32 v3, 15, v1""")
    for j in range(4):
        e(f"""v_add_u32 v4, {4*j}, v2
              v_and_b32 v5, 7, v4
              v_lshlrev_b32 v5, 1, v5
              v_xor_b32 v5, v3, v5
              v_mul_u32_u24 v4, 1280, v4
              v_lshl_add_u32 v4, v5, 4, v4
              v_subrev_u32 v{8+j}, {1024*j}, v4""")
    e(f"""s_lshl_b32 s6, s73, 2
          s_add_u32 s6, s6, s{S_WAVE}
          s_mul_i32 s6, s6, {16*1280}
          s_lshl_b32 s7, s{S_WAVE}, 12
          s_add_u32 s7, s7, {lds0}""")
    for p in range(5):
        e(f"s_mov_b32 m0, s7")
        e(f"s_add_u32 s7, s7, 16384")
        for j in range(4):
            e(f"buffer_load_dwordx4 v{8+j}, {srd(SRD_T0)}, s6 offen offset:{1024*j} lds")
        e(f"s_add_u32 s6, s6, 256")
    e(f"""v_lshrrev_b32 v2, 4, v1
          v_bfe_u32 v3, v1, 2, 2
          v_and_b32 v4, 3, v1
          v_lshrrev_b32 v5, 1, v2
          v_lshlrev_b32 v5, 4, v5
          v_and_b32 v6, 1, v2
          v_lshl_add_u32 v6, v6, 2, v3
          v_add_u32 v5, v5, v6
          v_lshlrev_b32 v12, 8, v5
          v_lshlrev_b32 v13, 1, v6
          v_mul_u32_u24 v14, 40, v4
          v_lshlrev_b32 v15, 4, v1
          s_waitcnt vmcnt(0)
          s_barrier""")
    e(f"s_mul_i32 s6, s{S_WAVE}, 320")
    e(f"s_lshl_b32 s7, s73, 1")
    for cc in range(2):
        for j in range(5):
            e(f"""v_add_u32 v16, s6, v14
                  v_add_u32 v16, {160*cc + 8*j}, v16
                  v_lshrrev_b32 v17, 4, v16
                  v_and_b32 v18, 15, v17
                  v_xor_b32 v18, v18, v13
                  v_lshrrev_b32 v17, 4, v17
                  v_lshlrev_b32 v17, 14, v17
                  v_lshl_add_u32 v17, v18, 4, v17
                  v_and_b32 v16, 8, v16
                  v_add3_u32 v17, v17, v16, v12""")
            if lds0:
                e(f"v_add_u32 v17, {lds0}, v17")
            for t in range(2):
                e(f"ds_read_b64_tr_b16 v[{20+4*t}:{21+4*t}], v17 offset:{8192*t}")
                e(f"ds_read_b64_tr_b16 v[{22+4*t}:{23+4*t}], v17 offset:{8192*t+2048}")
            e(f"""s_lshl_b32 s75, s{S_WAVE}, 1
                  s_add_u32 s75, s75, {cc}
                  s_mul_i32 s75, s75, 54
                  s_add_u32 s75, s75, s7
                  s_mul_i32 s75, s75, 5120
                  s_add_u32 s75, s75, {WS_W2F + 1024*j}
                  s_add_u32 s76, s75, 5120
                  s_waitcnt lgkmcnt(2)
                  buffer_store_dwordx4 v[20:23], v15, {srd(SRD_WS)}, s75 offen sc1
                  s_waitcnt lgkmcnt(0)
                  buffer_store_dwordx4 v[24:27], v15, {srd(SRD_WS)}, s76 offen sc1""")


class Q:
    def __init__(self, e, name, cap):
        self.e, self.name, self.cap, self.q = e, name, cap, []

    def issue(self, tag):
        self.q.append(tag)

    def need(self, *tags):
        idx = max((i for i, t in enumerate(self.q) if t in tags), default=-1)
        if idx < 0:
            return
        cnt = len(self.q) - 1 - idx
        if cnt <= self.cap:
            self.e(f"s_waitcnt {self.name}({cnt})")
        else:
            return
        self.q = self.q[idx + 1:]

    def drain(self):
        if self.q:
            self.e(f"s_waitcnt {self.name}(0)")
        self.q = []


G1_VW, G1_VX, G1_VA, G1_VB = 8, 12, 16, 20
G1_ACC, G1_P, G1_Qs = 64, 128, 144


def g1_setup(e):
    e(f"""s_lshr_b32 s6, s{S_XCD}, 1
          s_lshl_b32 s6, s6, 2
          s_and_b32 s7, s{S_SLOT}, 3
          s_add_u32 s77, s6, s7
          s_and_b32 s6, s{S_XCD}, 1
          s_mul_i32 s6, s6, 7
          s_lshr_b32 s7, s{S_SLOT}, 2
          s_add_u32 s78, s6, s7
          s_lshl_b32 s79, s78, 8
          s_mul_i32 s80, s77, {128*1280}
          s_lshl_b32 s81, s{S_WAVE}, 12
          s_and_b32 s82, s{S_WAVE}, 1
          s_lshr_b32 s83, s{S_WAVE}, 1
          v_lshrrev_b32 v2, 4, v1
          v_and_b32 v3, 15, v1
          v_lshlrev_b32 v4, 2, v2
          v_xor_b32 v4, v3, v4
          s_lshl_b32 s6, s{S_WAVE}, 4
          v_add_u32 v5, s6, v2
          v_mul_u32_u24 v5, 3456, v5
          v_lshl_add_u32 v{G1_VW}, v4, 4, v5
          s_cmp_eq_u32 s78, 13
          s_cselect_b32 s7, 8, 16
          v_cmp_le_u32 vcc, s7, v4
          v_mov_b32 v6, 0x7fff0000
          v_cndmask_b32 v{G1_VW}, v{G1_VW}, v6, vcc""")
    for j in range(1, 4):
        e(f"v_add_u32 v{G1_VW+j}, {j*(4*3456-1024)}, v{G1_VW}")
    e(f"""v_lshrrev_b32 v4, 3, v1
          v_and_b32 v5, 7, v1
          s_lshl_b32 s6, s{S_WAVE}, 5
          v_add_u32 v4, s6, v4
          v_mul_u32_u24 v4, 1280, v4""")
    for j in range(4):
        e(f"""v_add_u32 v6, {4*(j&1)}, v2
              v_xor_b32 v6, v5, v6
              v_lshl_add_u32 v6, v6, 4, v4
              v_add_u32 v{G1_VX+j}, {j*(8*1280-1024)}, v6""")
    e(f"""v_bfe_u32 v4, v1, 2, 2
          v_and_b32 v5, 3, v1
          v_lshrrev_b32 v6, 5, v1
          v_lshl_add_u32 v6, v6, 3, v4
          v_lshlrev_b32 v6, 8, v6
          s_lshl_b32 s6, s82, 1
          v_xor_b32 v4, s6, v4
          v_lshlrev_b32 v4, 2, v4
          v_and_b32 v7, 1, v2
          v_lshl_or_b32 v4, v7, 1, v4
          v_lshrrev_b32 v7, 1, v5
          v_or_b32 v4, v4, v7
          v_lshl_add_u32 v6, v4, 4, v6
          v_and_b32 v5, 1, v5
          v_lshl_add_u32 v{G1_VA}, v5, 3, v6
          v_xor_b32 v{G1_VA+1}, 64, v{G1_VA}
          v_add_u32 v{G1_VA+2}, 0x10000, v{G1_VA}
          v_add_u32 v{G1_VA+3}, 0x10000, v{G1_VA+1}
          v_and_b32 v4, 31, v1
          v_bfe_u32 v5, v1, 1, 3
          v_lshrrev_b32 v6, 5, v1
          v_xor_b32 v5, v5, v6
          s_lshl_b32 s6, s83, 6
          v_add_u32 v4, s6, v4
          v_lshlrev_b32 v4, 7, v4
          v_lshl_add_u32 v{G1_VB}, v5, 4, v4""")
    for ks in range(1, 4):
        e(f"v_xor_b32 v{G1_VB+ks}, {32*ks}, v{G1_VB}")
    for ks in range(4):
        e(f"v_add_u32 v{G1_VB+4+ks}, 0x10000, v{G1_VB+ks}")


def g1_dma(slab):
    slot = slab % 4
    out = []
    out.append(f"s_add_u32 m0, s81, {slot*32768}")
    if slab:
        out.append(f"s_add_u32 s79, s79, {64*3456}")
    else:
        out.append("s_nop 0")
    for j in range(4):
        out.append(f"buffer_load_dwordx4 v{G1_VW+j}, {srd(SRD_W1)}, s79 offen offset:{1024*j} lds")
    out.append(f"s_add_u32 m0, s81, {slot*32768+16384}")
    if slab:
        out.append(f"s_add_u32 s80, s80, 128")
    else:
        out.append("s_nop 0")
    for j in range(4):
        out.append(f"buffer_load_dwordx4 v{G1_VX+j}, {srd(SRD_X)}, s80 offen offset:{1024*j} lds")
    return out


def g1_reads(slab, ks, fs):
    slot = slab % 4
    hi = slot >= 2
    so = (slot & 1) * 32768
    va = G1_VA + (2 if hi else 0)
    vb = G1_VB + (4 if hi else 0) + ks
    r = []
    r.append(("A0", f"ds_read_b64_tr_b16 {vr(fs,2)}, v{va} offset:{so+ks*4096}"))
    r.append(("A0", f"ds_read_b64_tr_b16 {vr(fs+2,2)}, v{va} offset:{so+ks*4096+1024}"))
    r.append(("B0", f"ds_read_b128 {vr(fs+8,4)}, v{vb} offset:{so+16384}"))
    r.append(("B1", f"ds_read_b128 {vr(fs+12,4)}, v{vb} offset:{so+16384+4096}"))
    r.append(("A1", f"ds_read_b64_tr_b16 {vr(fs+4,2)}, v{va+1} offset:{so+ks*4096}"))
    r.append(("A1", f"ds_read_b64_tr_b16 {vr(fs+6,2)}, v{va+1} offset:{so+ks*4096+1024}"))
    return r


def g1_main(e, vm_extra=0):
    lq = Q(e, "lgkmcnt", 15)
    for i in range(64):
        e(f"v_mov_b32 v{G1_ACC+i}, 0")
    sets = [G1_P, G1_Qs]
    steps = [(sl, ks) for sl in range(10) for ks in range(4)]

    def group(cur, nxt, fill):
        rd = []
        if nxt is not None:
            n = steps.index(nxt)
            rd = [(f"{t}_{n}", x) for t, x in g1_reads(nxt[0], nxt[1], sets[n & 1])]
        fill = list(fill)
        if cur is None:
            for t, x in rd:
                e(x); lq.issue(t)
            for x in fill:
                e(x)
            return
        c = steps.index(cur)
        fs = sets[c & 1]
        order = [(0, 0, ("A0", "B0")), (0, 1, ("B1",)), (1, 0, ("A1",)), (1, 1, ())]
        per_r = [2, 2, 2, 0]
        nf = len(fill)
        per_f = [(nf * (m + 1)) // 4 - (nf * m) // 4 for m in range(4)]
        for m, (ft, st, nd) in enumerate(order):
            if nd:
                lq.need(*[f"{t}_{c}" for t in nd])
            acc = G1_ACC + (ft * 2 + st) * 16
            e(f"v_mfma_f32_32x32x16_bf16 {vr(acc,16)}, {vr(fs+4*ft,4)}, {vr(fs+8+4*st,4)}, {vr(acc,16)}")
            for _ in range(per_r[m]):
                if rd:
                    t, x = rd.pop(0); e(x); lq.issue(t)
            for _ in range(per_f[m]):
                e(fill.pop(0))

    for sl in range(10):
        nout = min(2, 9 - sl) * 8
        lq.drain()
        e(f"s_waitcnt vmcnt({nout})")
        e("s_barrier")
        dma = g1_dma(sl + 3) if sl + 3 < 10 else []
        group((sl - 1, 3) if sl else None, (sl, 0), dma)
        for ks in range(3):
            group((sl, ks), (sl, ks + 1), [])
    group((9, 3), None, [])


GELU_K0 = -2.0 * (2.0 / 3.141592653589793) ** 0.5 * 1.4426950408889634
GELU_K1 = GELU_K0 * 0.044715


def g1_epi_loads(e):
    e(f"""v_and_b32 v2, 31, v1
          s_lshl_b32 s6, s78, 7
          s_lshl_b32 s7, s82, 6
          s_add_u32 s6, s6, s7
          v_add_u32 v3, s6, v2
          v_lshlrev_b32 v3, 4, v3
          s_lshl_b32 s6, s77, 7
          s_lshl_b32 s7, s83, 6
          s_add_u32 s6, s6, s7
          v_add_u32 v4, s6, v2
          v_lshlrev_b32 v4, 4, v4
          v_mov_b32 v5, 0x7fff0000
          v_cmp_gt_u32 vcc, 32, v1
          v_cndmask_b32 v3, v5, v3, vcc
          v_cndmask_b32 v5, v5, v4, vcc
          s_mov_b32 s6, {WS_CS16}
          s_mov_b32 s7, {WS_STAT16}
          s_mov_b32 s84, {WS_STATF}
          buffer_load_dwordx4 v[28:31], v3, {srd(SRD_WS)}, s6 offen
          buffer_load_dwordx4 v[36:39], v5, {srd(SRD_WS)}, s7 offen
          buffer_load_dwordx4 v[32:35], v3, {srd(SRD_WS)}, s6 offen offset:512
          buffer_load_dwordx4 v[40:43], v5, {srd(SRD_WS)}, s7 offen offset:512
          buffer_load_dwordx4 v[44:47], v4, {srd(SRD_WS)}, s84 offen
          buffer_load_dwordx4 v[48:51], v4, {srd(SRD_WS)}, s84 offen offset:512""")


def g1_epilogue(e):
    e("s_waitcnt vmcnt(0)")
    for ft in range(2):
        for st in range(2):
            acc = G1_ACC + (ft * 2 + st) * 16
            e(f"v_mfma_f32_32x32x16_bf16 {vr(acc,16)}, {vr(28+4*ft,4)}, {vr(36+4*st,4)}, {vr(acc,16)}")
    for st in range(2):
        r, sg = 45 + 4 * st, 46 + 4 * st
        e(f"""v_mul_f32 v{52+4*st}, {GELU_K0!r}, v{r}
              v_mul_f32 v2, v{r}, v{r}
              v_mul_f32 v2, v2, v{r}
              v_mul_f32 v{53+4*st}, {GELU_K1!r}, v2
              v_mov_b32 v{54+4*st}, v{sg}
              v_mov_b32 v{55+4*st}, v{sg}""")
    e(f"""v_and_b32 v2, 15, v1
          v_lshrrev_b32 v3, 3, v2
          v_lshlrev_b32 v3, 3, v3
          v_and_b32 v4, 1, v2
          v_lshl_or_b32 v3, v4, 2, v3
          v_bfe_u32 v4, v2, 1, 2
          v_or_b32 v3, v3, v4
          v_lshlrev_b32 v3, 4, v3
          v_bfe_u32 v4, v1, 4, 1
          v_lshl_or_b32 v3, v4, 10, v3
          v_lshrrev_b32 v4, 5, v1
          v_lshl_or_b32 v3, v4, 8, v3
          s_lshl_b32 s6, s77, 1
          s_add_u32 s6, s6, s83
          s_mul_i32 s6, s6, 54
          s_lshl_b32 s7, s78, 2
          s_add_u32 s6, s6, s7
          s_lshl_b32 s7, s82, 1
          s_add_u32 s6, s6, s7
          s_lshl_b32 s6, s6, 12
          s_add_u32 s6, s6, {WS_HF}
          s_add_u32 s7, s6, 4096
          s_nop 7""")
    T = 160
    for ft in range(2):
        for st in range(2):
            acc = G1_ACC + (ft * 2 + st) * 16
            KK, SS = vr(52 + 4 * st, 2), vr(54 + 4 * st, 2)
            for u in range(2):
                z = [acc + 8 * u + 2 * p for p in range(4)]
                t = [T + 2 * p for p in range(4)]
                for p in range(4):
                    e(f"v_pk_mul_f32 {vr(t[p],2)}, {vr(z[p],2)}, {vr(z[p],2)}")
                for p in range(4):
                    e(f"v_pk_fma_f32 {vr(t[p],2)}, {vr(t[p],2)}, {KK}, {KK} op_sel:[0,1,0] op_sel_hi:[1,1,0]")
                for p in range(4):
                    e(f"v_pk_mul_f32 {vr(t[p],2)}, {vr(t[p],2)}, {vr(z[p],2)}")
                for p in range(4):
                    e(f"v_exp_f32 v{t[p]}, v{t[p]}\nv_exp_f32 v{t[p]+1}, v{t[p]+1}")
                for p in range(4):
                    e(f"v_pk_fma_f32 {vr(t[p],2)}, {vr(t[p],2)}, {SS}, {SS}")
                for p in range(4):
                    e(f"v_rcp_f32 v{t[p]}, v{t[p]}\nv_rcp_f32 v{t[p]+1}, v{t[p]+1}")
                for p in range(4):
                    e(f"v_pk_mul_f32 {vr(t[p],2)}, {vr(t[p],2)}, {vr(z[p],2)}")
                o = 168 + 4 * ((ft * 4 + st * 2 + u) & 3)
                for p in range(4):
                    e(f"v_cvt_pk_bf16_f32 v{o+p}, v{t[p]}, v{t[p]+1}")
                e(f"buffer_store_dwordx4 {vr(o,4)}, v3, {srd(SRD_WS)}, s{6+ft} offen offset:{st*2048+u*512} sc1")


def k1(e):
    end = e.lab("end")
    prologue(e, end)
    e(f"""s_cmp_ge_u32 s{S_SLOT}, 28
          s_cbranch_scc1 {end}""")
    g1_setup(e)
    for sl in range(3):
        for x in g1_dma(sl):
            e(x)
    g1_main(e)
    e(f"""s_cmp_eq_u32 s78, 13
          s_cselect_b32 s6, s82, 0
          s_cmp_lg_u32 s6, 0
          s_cbranch_scc1 {end}""")
    g1_epi_loads(e)
    g1_epilogue(e)
    e(f"{end}:\ns_endpgm")


CV_H, CV_HS, CV_X, CV_XS, CV_CH = 0, 4416, 17664, 6272, 30208
CV_A, CV_B, CV_ACC = 64, 96, 112


def mk_srd_off(e, dst, ptr, soff, size):
    e(f"""s_add_u32 s{dst}, s{ptr}, s{soff}
          s_addc_u32 s{dst+1}, s{ptr+1}, 0
          s_and_b32 s{dst+1}, s{dst+1}, 0xffff
          s_mov_b32 s{dst+2}, {size}
          s_mov_b32 s{dst+3}, 0x20000""")


def conv_ids(e):
    e(f"""s_lshl_b32 s6, s{S_XCD}, 4
          s_lshr_b32 s7, s{S_SLOT}, 1
          s_add_u32 s6, s6, s7
          s_mul_i32 s6, s6, 5
          s_and_b32 s89, s{S_SLOT}, 1
          s_lshl_b32 s7, s89, 1
          s_add_u32 s88, s6, s7""")


def conv_hdma(e, lds0):
    e(f"""s_lshl_b32 s6, s{S_WAVE}, 2
          v_lshlrev_b32 v2, 2, v1
          v_add_u32 v2, s6, v2
          v_subrev_u32 v2, 252, v2
          v_lshlrev_b32 v3, 4, v1
          v_add_u32 v3, s6, v3
          v_add_u32 v3, 4, v3
          s_mul_i32 s90, s{S_WAVE}, {CV_HS}""")
    for lc in range(3):
        e(f"""s_add_u32 s6, s88, {lc}
              s_lshl_b32 s6, s6, 12""")
        mk_srd_off(e, SRD_T0, P_SSMK, 6, 4096)
        e(f"""s_add_u32 m0, s90, {lds0 + lc*CV_CH + CV_H}
              s_nop 0
              buffer_load_dword v2, {srd(SRD_T0)}, 0 offen lds
              s_add_u32 m0, s90, {lds0 + lc*CV_CH + CV_H + 256}
              s_nop 0""")
        for j in range(4):
            e(f"buffer_load_dwordx4 v3, {srd(SRD_T0)}, 0 offen offset:{1024*j} lds")


def conv_xload(e, X):
    e("v_lshlrev_b32 v4, 4, v0")
    for lc in range(3):
        e(f"""s_add_u32 s6, s88, {lc}
              s_lshl_b32 s6, s6, 12
              s_add_u32 s6, s6, {WS_XR}""")
        mk_srd_off(e, SRD_T1, P_WS, 6, 4096)
        e(f"""buffer_load_dwordx4 {vr(X+6*lc,4)}, v4, {srd(SRD_T1)}, 0 offen
              buffer_load_dword v{X+6*lc+4}, v4, {srd(SRD_T1)}, 0 offen offset:16""")


def conv_xwrite(e, X, lds0, vq):
    e(f"""v_lshrrev_b32 v4, 4, v0
          v_mul_u32_u24 v4, 272, v4
          v_and_b32 v5, 15, v0
          v_lshl_add_u32 v4, v5, 4, v4
          v_add_u32 v4, {lds0 + CV_X}, v4
          v_lshlrev_b32 v5, 4, v0
          v_add_u32 v5, {lds0 + CV_X + 16*272}, v5
          v_add_u32 v6, {2*CV_CH}, v4
          v_add_u32 v7, {2*CV_CH}, v5
          v_mov_b32 v12, 0
          v_mov_b32 v13, 0
          v_mov_b32 v14, 0
          v_mov_b32 v15, 0
          v_cmp_gt_u32 vcc, 119, v0
          s_and_saveexec_b64 s[6:7], vcc""")
    for lc in range(3):
        va, o = ("v5", lc * CV_CH) if lc < 2 else ("v7", 0)
        e(f"ds_write_b128 {va}, v[12:15] offset:{o}")
        e(f"ds_write_b128 {va}, v[12:15] offset:{o+CV_XS}")
    e("s_mov_b64 exec, s[6:7]")
    for lc in range(3):
        x = X + 6 * lc
        vq(lc)
        va, o = ("v4", lc * CV_CH) if lc < 2 else ("v6", 0)
        e(f"ds_write_b128 {va}, {vr(x,4)} offset:{o+CV_XS}")
        for d in range(4):
            e(f"v_alignbit_b32 v{12+d}, v{x+d+1}, v{x+d}, 16")
        e(f"ds_write_b128 {va}, v[12:15] offset:{o}")


def conv_units(e, lds0):
    e(f"""s_lshl_b32 s6, s89, 2
          s_add_u32 s6, s6, s{S_WAVE}
          s_lshl_b32 s7, s6, 1
          s_lshr_b32 s85, 6436, s7
          s_and_b32 s85, s85, 3
          s_lshr_b32 s86, 55, s6
          s_and_b32 s86, s86, 1
          s_lshr_b32 s87, 61311, s7
          s_and_b32 s87, s87, 3
          v_and_b32 v2, 3, v1
          v_mul_u32_u24 v2, {CV_HS}, v2
          v_bfe_u32 v3, v1, 2, 2
          v_lshrrev_b32 v4, 4, v1
          v_add_u32 v3, v3, v4
          v_lshl_add_u32 v16, v3, 4, v2
          v_and_b32 v2, 1, v1
          v_mul_u32_u24 v2, {CV_XS}, v2
          v_bfe_u32 v3, v1, 1, 3
          s_lshl_b32 s6, s86, 3
          s_sub_u32 s6, 15, s6
          v_sub_u32 v5, s6, v3
          v_mul_u32_u24 v5, 272, v5
          v_add_u32 v2, v2, v5
          v_lshl_add_u32 v17, v4, 4, v2
          s_lshl_b32 s6, s86, 3
          v_add_u32 v3, s6, v3
          v_lshlrev_b32 v3, 8, v3
          v_and_b32 v2, 1, v1
          v_lshl_or_b32 v2, v4, 1, v2
          v_lshl_or_b32 v11, v2, 4, v3""")
    loop_u = e.lab("cvunit")
    loop_t = e.lab("cvloop")
    done = e.lab("cvdone")
    e(f"""{loop_u}:
          s_mul_i32 s6, s85, {CV_CH}
          s_add_u32 s6, s6, {lds0}
          v_add_u32 v8, s6, v16
          s_add_u32 s6, s6, {CV_X}
          v_add_u32 v9, s6, v17
          v_lshlrev_b32 v10, 5, v4
          v_sub_u32 v10, v9, v10
          s_add_u32 s91, s88, s85
          s_lshl_b32 s6, s91, 1
          s_and_b32 s6, s6, 0xfffffffc
          s_load_dword s92, s[{P_SSMD}:{P_SSMD+1}], s6
          s_lshl_b32 s93, s86, 2
          s_add_u32 s93, s93, 4""")
    for n in range(8):
        e(f"ds_read_b128 {vr(CV_A+4*n,4)}, v8 offset:{64*n}")
    for t in range(3):
        e(f"ds_read_b128 {vr(CV_B+4*t,4)}, v9 offset:{64*t}")
    for i in range(16):
        e(f"v_mov_b32 v{CV_ACC+i}, 0")
    e("s_waitcnt lgkmcnt(0)")
    e(f"{loop_t}:")
    lq = Q(e, "lgkmcnt", 15)
    def body(emit):
        for t in range(8):
            tb = t + 3
            boff = (tb >> 2) * 272 + (tb & 3) * 64
            if emit:
                lq.need(f"A{(t+3)&7}", f"B{t&3}")
            for p in range(4):
                if emit:
                    e(f"v_mfma_f32_16x16x32_bf16 {vr(CV_ACC+4*p,4)}, {vr(CV_A+4*((t+p)&7),4)}, {vr(CV_B+4*(t&3),4)}, {vr(CV_ACC+4*p,4)}")
                if p == 0:
                    if emit:
                        e(f"ds_read_b128 {vr(CV_A+4*(t&7),4)}, v8 offset:{64*(t+8)}")
                    lq.issue(f"A{t&7}")
                if p == 1:
                    if emit:
                        e(f"ds_read_b128 {vr(CV_B+4*(tb&3),4)}, v9 offset:{boff}")
                    lq.issue(f"B{tb&3}")
    body(False)
    lq.q = lq.q[-15:]
    body(True)
    e(f"""v_add_u32 v8, 512, v8
          v_add_u32 v9, 544, v9
          s_sub_u32 s93, s93, 1
          s_cmp_lg_u32 s93, 0
          s_cbranch_scc1 {loop_t}
          s_waitcnt lgkmcnt(0)""")
    for p in range(4):
        e(f"ds_read_b128 {vr(CV_A+4*p,4)}, v10 offset:{48+64*(3-p)}")
    e(f"""s_and_b32 s6, s91, 1
          s_lshl_b32 s6, s6, 4
          s_lshr_b32 s92, s92, s6
          s_lshl_b32 s92, s92, 16
          s_lshl_b32 s6, s91, 12
          s_add_u32 s6, s6, {WS_Y2}
          s_nop 4
          s_waitcnt lgkmcnt(0)""")
    for p in range(4):
        for ci in range(4):
            e(f"v_lshlrev_b32 v{CV_A+4*p+3-ci}, 16, v{CV_A+4*p+3-ci}")
            e(f"v_fma_f32 v{CV_ACC+4*p+ci}, v{CV_A+4*p+3-ci}, s92, v{CV_ACC+4*p+ci}")
    for P in range(2):
        for h in range(2):
            a = CV_ACC + 4 * (2 * P + h)
            e(f"v_cvt_pk_bf16_f32 v{CV_B+4*P+2*h}, v{a}, v{a+1}")
            e(f"v_cvt_pk_bf16_f32 v{CV_B+4*P+2*h+1}, v{a+2}, v{a+3}")
        e(f"buffer_store_dwordx4 {vr(CV_B+4*P,4)}, v11, {srd(SRD_WS)}, s6 offen offset:{128*P} sc1")
    e(f"""s_cmp_eq_u32 s87, 3
          s_cbranch_scc1 {done}
          s_mov_b32 s85, s87
          s_mov_b32 s87, 3
          s_branch {loop_u}
          {done}:""")


def k2(e):
    end = e.lab("end")
    prologue(e, end)
    conv_ids(e)
    conv_hdma(e, 0)
    conv_xload(e, 20)
    def vq(lc):
        e(f"s_waitcnt vmcnt({2*(2-lc)})")
    conv_xwrite(e, 20, 0, vq)
    e("s_waitcnt vmcnt(0) lgkmcnt(0)\ns_barrier")
    conv_units(e, 0)
    e(f"{end}:\ns_endpgm")


G2_H, G2_ACC, G2_WV = 64, 128, 208
G2_VH = 56
G2_RED, G2_Y = 0, 61440


def g2_ids(e):
    e(f"""s_lshr_b32 s6, s{S_XCD}, 1
          s_lshl_b32 s6, s6, 3
          s_and_b32 s7, s{S_SLOT}, 7
          s_add_u32 s94, s6, s7
          s_and_b32 s6, s{S_XCD}, 1
          s_lshl_b32 s6, s6, 2
          s_lshr_b32 s7, s{S_SLOT}, 3
          s_add_u32 s95, s6, s7
          s_mul_i32 s96, s{S_WAVE}, 14
          s_cmp_eq_u32 s{S_WAVE}, 3
          s_cselect_b32 s6, 1, 0
          s_sub_u32 s96, s96, s6""")


def g2_wreg(t, j):
    if t < 12:
        return ar(t * 20 + j * 4, 4)
    return vr(G2_WV + (t - 12) * 20 + j * 4, 4)


def g2_w2load_list(vaddr):
    out = []
    for t in range(14):
        for j in range(5):
            if j == 4:
                out.append(f"buffer_load_dwordx4 {g2_wreg(t,j)}, v{vaddr}, {srd(SRD_WS)}, s98 offen")
            else:
                out.append(f"buffer_load_dwordx4 {g2_wreg(t,j)}, v{vaddr}, {srd(SRD_WS)}, s97 offen offset:{1024*j}")
        out.append("s_add_u32 s97, s97, 5120")
        out.append("s_add_u32 s98, s98, 5120")
    return out


def g2_w2load_setup(e):
    e(f"""s_mul_i32 s6, s95, 54
          s_add_u32 s6, s6, s96
          s_mul_i32 s97, s6, 5120
          s_add_u32 s97, s97, {WS_W2F}
          s_add_u32 s98, s97, 4096""")


def g2_hsetup(e):
    e(f"""s_mul_i32 s6, s94, 54
          s_add_u32 s6, s6, s96
          s_lshl_b32 s99, s6, 12
          s_add_u32 s99, s99, {WS_HF}
          v_lshlrev_b32 v2, 4, v1""")
    for u in range(4):
        e(f"""s_add_u32 s6, s{S_WAVE}, {u}
              s_and_b32 s6, s6, 3
              s_lshl_b32 s6, s6, 10
              v_add_u32 v{G2_VH+u}, s6, v2""")


def g2_hloads(t):
    out = [f"buffer_load_dwordx4 {vr(G2_H+16*(t&3)+4*u,4)}, v{G2_VH+u}, {srd(SRD_WS)}, s99 offen" for u in range(4)]
    out.append("s_add_u32 s99, s99, 4096")
    return out


def g2_main(e, vq):
    skip = e.lab("g2skip")
    for i in range(80):
        e(f"v_mov_b32 v{G2_ACC+i}, 0")
    for t in range(14):
        if t == 13:
            e(f"""s_cmp_ge_u32 s{S_WAVE}, 2
                  s_cbranch_scc1 {skip}""")
        vq.need(f"h{t}")
        fill = g2_hloads(t + 3) if t + 3 < 14 else []
        m = 0
        for j in range(5):
            for u in range(4):
                acc = G2_ACC + (u * 5 + j) * 4
                e(f"v_mfma_f32_16x16x32_bf16 {vr(acc,4)}, {g2_wreg(t,j)}, {vr(G2_H+16*(t&3)+4*u,4)}, {vr(acc,4)}")
                m += 1
                if fill and m % 4 == 1:
                    x = fill.pop(0); e(x)
                    if x.startswith("buffer"):
                        vq.issue(f"h{t+3}")
    e(f"{skip}:")


def g2_final_loads(e, lds0):
    mk_srd(e, SRD_T0, P_B2, D * 2)
    e(f"""v_and_b32 v2, 15, v1
          v_lshrrev_b32 v3, 4, v1
          v_lshrrev_b32 v4, 3, v2
          v_lshlrev_b32 v4, 3, v4
          v_and_b32 v5, 3, v2
          v_lshl_or_b32 v4, v5, 1, v4
          v_bfe_u32 v5, v2, 2, 1
          v_or_b32 v4, v4, v5
          s_lshl_b32 s6, s94, 6
          s_lshl_b32 s7, s{S_WAVE}, 4
          s_add_u32 s6, s6, s7
          v_add_u32 v4, s6, v4
          v_lshlrev_b32 v5, 4, v4
          v_mul_u32_u24 v4, 1280, v4
          v_mul_u32_u24 v3, 40, v3
          s_mul_i32 s6, s95, 160
          v_add_u32 v3, s6, v3
          v_add_u32 v60, v4, v3
          s_mov_b32 s7, {WS_STATF}
          buffer_load_dwordx4 v[8:11], v60, {srd(SRD_X)}, 0 offen
          buffer_load_dwordx4 v[12:15], v60, {srd(SRD_X)}, 0 offen offset:16
          buffer_load_dwordx2 v[16:17], v60, {srd(SRD_X)}, 0 offen offset:32
          buffer_load_dwordx4 v[20:23], v3, {srd(SRD_T0)}, 0 offen
          buffer_load_dwordx4 v[24:27], v3, {srd(SRD_T0)}, 0 offen offset:16
          buffer_load_dwordx2 v[28:29], v3, {srd(SRD_T0)}, 0 offen offset:32
          buffer_load_dwordx4 v[32:35], v5, {srd(SRD_WS)}, s7 offen""")


def g2_y2dma(e, lds0):
    skip = e.lab("y2skip")
    e(f"""v_lshrrev_b32 v2, 3, v1
          v_and_b32 v3, 7, v1
          v_lshlrev_b32 v3, 4, v3
          v_lshl_add_u32 v61, v2, 12, v3
          s_mul_i32 s6, s95, 80
          s_lshl_b32 s7, s{S_WAVE}, 3
          s_add_u32 s6, s6, s7
          s_lshl_b32 s6, s6, 12
          s_lshl_b32 s7, s94, 7
          s_add_u32 s6, s6, s7
          s_add_u32 s6, s6, {WS_Y2}
          s_lshl_b32 s7, s{S_WAVE}, 10
          s_add_u32 s7, s7, {lds0 + G2_Y}""")
    for n in range(3):
        if n == 2:
            e(f"""s_cmp_ge_u32 s{S_WAVE}, 2
                  s_cbranch_scc1 {skip}""")
        e(f"""s_mov_b32 m0, s7
              s_add_u32 s7, s7, 4096
              buffer_load_dwordx4 v61, {srd(SRD_WS)}, s6 offen lds
              s_add_u32 s6, s6, {32*4096}""")
    e(f"{skip}:")


def g2_reduce_final(e, lds0):
    e(f"""v_lshlrev_b32 v2, 4, v1
          s_mul_i32 s6, s{S_WAVE}, 15360
          s_add_u32 s6, s6, {lds0 + G2_RED}
          v_add_u32 v62, s6, v2""")
    for u in range(1, 4):
        e(f"""s_add_u32 s6, s{S_WAVE}, {u}
              s_and_b32 s6, s6, 3
              s_mul_i32 s6, s6, 15360
              s_add_u32 s6, s6, {lds0 + G2_RED + (u-1)*5120}
              v_add_u32 v{G2_VH+u}, s6, v2""")
    e("s_nop 4")
    for u in range(1, 4):
        for j in range(5):
            e(f"ds_write_b128 v{G2_VH+u}, {vr(G2_ACC+(u*5+j)*4,4)} offset:{1024*j}")
    e(f"""v_lshrrev_b32 v3, 4, v1
          v_mul_u32_u24 v3, 20, v3
          v_bfe_u32 v4, v1, 2, 2
          v_add_u32 v3, v3, v4
          v_lshlrev_b32 v3, 7, v3
          v_and_b32 v4, 3, v1
          v_lshl_add_u32 v3, v4, 4, v3
          s_and_b32 s6, s{S_WAVE}, 1
          s_lshl_b32 s6, s6, 6
          s_lshr_b32 s7, s{S_WAVE}, 1
          s_lshl_b32 s7, s7, 3
          s_add_u32 s6, s6, s7
          s_add_u32 s6, s6, {lds0 + G2_Y}
          v_add_u32 v63, s6, v3
          s_waitcnt vmcnt(0) lgkmcnt(0)
          s_barrier""")
    R = G2_H
    for u in range(3):
        for j in range(5):
            e(f"ds_read_b128 {vr(R+(u*5+j)*4,4)}, v62 offset:{u*5120+1024*j}")
    for j in range(5):
        e(f"ds_read_b64_tr_b16 {vr(36+2*j,2)}, v63 offset:{512*j}")
    e(f"""v_mul_f32 v46, v32, v33
          v_sub_f32 v46, 0, v46
          v_mov_b32 v47, v33
          v_mov_b32 v48, {-1.4426950408889634!r}
          v_mov_b32 v49, 1.0""")
    for u in range(3):
        e(f"s_waitcnt lgkmcnt({min(15, 5 + 5*(2-u))})")
        for j in range(5):
            for h in range(2):
                a = G2_ACC + j * 4 + 2 * h
                e(f"v_pk_add_f32 {vr(a,2)}, {vr(a,2)}, {vr(R+(u*5+j)*4+2*h,2)}")
    e("s_waitcnt lgkmcnt(0)")
    X, B2, Y = 8, 20, 36
    T = 64
    O = 100
    C = "v[46:47]"
    for k0 in range(0, 10, 5):
        ks = range(k0, k0 + 5)
        a = {k: G2_ACC + 2 * k for k in ks}
        t = {k: T + 2 * (k - k0) for k in ks}
        xf = {k: T + 10 + 2 * (k - k0) for k in ks}
        yf = {k: T + 20 + 2 * (k - k0) for k in ks}
        for k in ks:
            e(f"v_lshlrev_b32 v{t[k]}, 16, v{B2+k}\nv_and_b32 v{t[k]+1}, 0xffff0000, v{B2+k}")
        for k in ks:
            e(f"v_pk_add_f32 {vr(a[k],2)}, {vr(a[k],2)}, {vr(t[k],2)}")
        for k in ks:
            e(f"v_pk_mul_f32 {vr(t[k],2)}, {vr(a[k],2)}, v[48:49] op_sel_hi:[1,0]")
        for k in ks:
            e(f"v_exp_f32 v{t[k]}, v{t[k]}\nv_exp_f32 v{t[k]+1}, v{t[k]+1}")
        for k in ks:
            e(f"v_lshlrev_b32 v{xf[k]}, 16, v{X+k}\nv_and_b32 v{xf[k]+1}, 0xffff0000, v{X+k}")
        for k in ks:
            e(f"v_pk_add_f32 {vr(t[k],2)}, {vr(t[k],2)}, v[48:49] op_sel:[0,1] op_sel_hi:[1,1]")
        for k in ks:
            e(f"v_rcp_f32 v{t[k]}, v{t[k]}\nv_rcp_f32 v{t[k]+1}, v{t[k]+1}")
        for k in ks:
            e(f"v_lshlrev_b32 v{yf[k]}, 16, v{Y+k}\nv_and_b32 v{yf[k]+1}, 0xffff0000, v{Y+k}")
        for k in ks:
            e(f"v_pk_mul_f32 {vr(t[k],2)}, {vr(t[k],2)}, {vr(a[k],2)}")
        for k in ks:
            e(f"v_pk_fma_f32 {vr(a[k],2)}, {vr(xf[k],2)}, {C}, {C} op_sel:[0,1,0] op_sel_hi:[1,1,0]")
        for k in ks:
            e(f"v_pk_mul_f32 {vr(a[k],2)}, {vr(a[k],2)}, {vr(yf[k],2)}")
        for k in ks:
            e(f"v_pk_fma_f32 {vr(a[k],2)}, {vr(a[k],2)}, {vr(t[k],2)}, {vr(xf[k],2)}")
        for k in ks:
            e(f"v_cvt_pk_bf16_f32 v{O+k}, v{a[k]}, v{a[k]+1}")
    e(f"""buffer_store_dwordx4 {vr(O,4)}, v60, {srd(SRD_OUT)}, 0 offen
          buffer_store_dwordx4 {vr(O+4,4)}, v60, {srd(SRD_OUT)}, 0 offen offset:16
          buffer_store_dwordx2 {vr(O+8,2)}, v60, {srd(SRD_OUT)}, 0 offen offset:32""")


def k3(e):
    end = e.lab("end")
    prologue(e, end)
    g2_ids(e)
    g2_w2load_setup(e)
    e("v_lshlrev_b32 v59, 4, v1")
    e("v_mov_b32 v55, v59")
    for x in g2_w2load_list(55):
        e(x)
    g2_final_loads(e, 0)
    g2_y2dma(e, 0)
    e("s_waitcnt vmcnt(0)")
    g2_hsetup(e)
    vq = Q(e, "vmcnt", 63)
    for t in range(3):
        for x in g2_hloads(t):
            e(x)
            if x.startswith("buffer"):
                vq.issue(f"h{t}")
    g2_main(e, vq)
    g2_reduce_final(e, 0)
    e(f"{end}:\ns_endpgm")


def kernel_header(e, label):
    e(f""".globl {label}
          .p2align 8
          .type {label},@function
          {label}:""")


def kernel_desc(label, vgpr=256, agpr=256):
    return f""".amdhsa_kernel {label}
  .amdhsa_next_free_vgpr {vgpr + agpr}
  .amdhsa_next_free_sgpr 102
  .amdhsa_accum_offset {vgpr}
  .amdhsa_group_segment_fixed_size 0
  .amdhsa_kernarg_size 112
  .amdhsa_user_sgpr_count 2
  .amdhsa_user_sgpr_kernarg_segment_ptr 1
  .amdhsa_system_sgpr_workgroup_id_x 1
.end_amdhsa_kernel
"""


def k0(e):
    end = e.lab("end")
    prologue(e, end)
    phase_p0(e, 0)
    e(f"""s_cmp_lt_u32 s{S_SLOT}, 28
          s_cbranch_scc1 {end}
          s_lshl_b32 s73, s{S_XCD}, 2
          s_add_u32 s73, s73, s{S_SLOT}
          s_sub_u32 s73, s73, 28""")
    phase_stats(e)
    e(f"""s_cmp_ge_u32 s73, 27
          s_cbranch_scc1 {end}
          s_barrier""")
    phase_colsum(e, 0)
    e("s_barrier")
    phase_w2f(e, 0)
    e(f"{end}:\ns_endpgm")


def main():
    mode, out = sys.argv[1], sys.argv[2]
    e = Emit()
    kernels = []
    if mode == "multi":
        which = sys.argv[3].split(",") if len(sys.argv) > 3 else ["k0"]
        head = ""
        for k in which:
            head += f"; @launch kernel={k}_kernel grid=(256,1,1) block=(256,1,1) lds=163840\n"
        body = Emit()
        for k in dict.fromkeys(which):
            kernel_header(body, k + "_kernel")
            globals()[k](body)
            kernels.append(k + "_kernel")
        txt = head + '.amdgcn_target "amdgcn-amd-amdhsa--gfx950"\n.text\n' + body.text()
        txt += '.section .rodata,"a"\n'
        for k in kernels:
            txt += ".p2align 6\n" + kernel_desc(k)
        open(out, "w").write(txt)


if __name__ == "__main__":
    main()
```

```python
import sys
from gen import (NAME, S, D, F, WS_FLAGS, WS_STAT16, WS_STATF, WS_CS16, WS_XR, WS_Y2, WS_W2F, WS_HF, WS_USED,
                 S_WG, S_XCD, S_SLOT, S_WAVE, SRD_X, SRD_K, SRD_V, SRD_W1, SRD_WS, SRD_OUT, SRD_T0, SRD_T1,
                 P_Q, P_K, P_V, P_SHK, P_SSMK, P_SSMD, P_BX, P_W1, P_B1, P_W2, P_B2, P_OUT, P_DBG, P_WS,
                 srd, vr, ar, Emit, mk_srd, mk_srd_off, GELU_K0, GELU_K1)

OPT = dict(stamps=0, spin=200000, p0sp=6, nt=1, pf=1, pfnt=1, pf0=5)
WS_STAMP = 0x030000
SRD_DBG = 52
FL_KV, FL_ST, FL_CS, FL_W2, FL_H, FL_Y = 0, 4, 8, 12, 16, 20
V_L16, V_FLAG, V_ONE, V_POLL, V_STAMP = 248, 252, 253, 254, 255
V_POLL2, V_PST = 251, 231
V_PA1, V_PA2, V_PA3, V_PA4, V_PCNT = 228, 229, 249, 250, 230
S_SPIN = 42
OOB = 0x7fff0000

LDS_P0 = 131072
LDS_CV = 65536
SP_CS = 81920


NAMES = []


class Q:
    def __init__(self, e, name, cap):
        self.e, self.name, self.cap, self.q = e, name, cap, []

    def issue(self, tag, n=1):
        self.q += [tag] * n

    def need(self, *tags):
        idx = max((i for i, t in enumerate(self.q) if t in tags), default=-1)
        if idx < 0:
            return
        cnt = len(self.q) - 1 - idx
        assert cnt <= self.cap or self.name == "lgkmcnt", (self.name, cnt)
        self.e(f"s_waitcnt {self.name}({min(cnt, self.cap)})")
        if cnt <= self.cap:
            self.q = self.q[idx + 1:]
        else:
            self.q = self.q[len(self.q) - self.cap:]

    def drain(self):
        if self.q:
            self.e(f"s_waitcnt {self.name}(0)")
        self.q = []


class K:
    def __init__(self):
        self.e = Emit()
        self.vq = Q(self.e, "vmcnt", 63)
        self.tail = []
        self.nstamp = 0

    def stamp(self, name):
        if not OPT["stamps"]:
            return
        self.e(f"""s_memtime s[44:45]
                   s_waitcnt lgkmcnt(0)
                   v_writelane_b32 v{V_STAMP}, s44, {self.nstamp}""")
        NAMES.append(name)
        self.nstamp += 1

    def vm(self, text, tag):
        for x in text.strip().split("\n"):
            x = x.strip()
            if not x:
                continue
            self.e(x)
            if x.startswith("buffer_"):
                self.vq.issue(tag)

    def set_flag(self, off):
        e = self.e
        sk = e.lab("fl")
        e(f"""s_cmp_lg_u32 s{S_WAVE}, 0
              s_cbranch_scc1 {sk}
              s_mov_b64 exec, 1
              buffer_store_dword v{V_ONE}, v{V_FLAG}, {srd(SRD_WS)}, 0 offen offset:{off} sc1
              s_mov_b64 exec, -1
              {sk}:""")

    def poll_issue(self, vaddr, tag, dbg=False, dst=V_POLL):
        self.vm(f"buffer_load_dword v{dst}, v{vaddr}, {srd(SRD_DBG if dbg else SRD_WS)}, 0 offen sc1", tag)

    def poll_check(self, vaddr, tag, dbg=False, dst=V_POLL):
        e = self.e
        slow, back = e.lab("slow"), e.lab("back")
        cmp = f"v_cmp_gt_u32 vcc, 32, v{dst}" if dbg else f"v_cmp_eq_u32 vcc, 0, v{dst}"
        self.vq.need(tag)
        if vaddr in (V_PA1, V_PA2, V_PCNT, V_PST):
            e(f"""s_cmp_lg_u32 s{S_WAVE}, 0
                  s_cbranch_scc1 {back}""")
        e(f"""{cmp}
              s_cbranch_vccnz {slow}
              {back}:""")
        self.tail.append(f"""{slow}:
              s_add_u32 s{S_SPIN}, s{S_SPIN}, 1
              s_cmp_gt_u32 s{S_SPIN}, {OPT['spin']}
              s_cbranch_scc1 {back}
              buffer_load_dword v{dst}, v{vaddr}, {srd(SRD_DBG if dbg else SRD_WS)}, 0 offen sc1
              s_waitcnt vmcnt(0)
              {cmp}
              s_cbranch_vccnz {slow}
              s_branch {back}""")

    def poll_block(self, vaddr, tag, dbg=False):
        self.poll_issue(vaddr, tag, dbg)
        self.poll_check(vaddr, tag, dbg)


def prologue(k):
    e = k.e
    e(f"""s_cmp_ge_u32 s2, 256
          s_cbranch_scc1 L_end
          {"s_memrealtime s[68:69]" if OPT["stamps"] else ""}
          s_load_dwordx16 s[40:55], s[0:1], 0
          s_load_dwordx8 s[56:63], s[0:1], 64
          s_load_dwordx4 s[64:67], s[0:1], 96
          s_and_b32 s{S_XCD}, s2, 7
          s_lshr_b32 s{S_SLOT}, s2, 3
          v_lshrrev_b32 v1, 6, v0
          v_and_b32 v0, 0xff, v0
          v_mov_b32 v{V_ONE}, 1
          v_readfirstlane_b32 s{S_WAVE}, v1
          v_and_b32 v1, 63, v0
          s_lshl_b32 s6, s2, 7
          v_mov_b32 v{V_FLAG}, s6
          v_lshlrev_b32 v{V_L16}, 4, v1
          v_and_b32 v{V_PCNT}, 7, v1
          v_lshlrev_b32 v{V_PCNT}, 5, v{V_PCNT}
          v_mov_b32 v{V_STAMP}, 0
          s_waitcnt lgkmcnt(0)""")
    mk_srd(e, SRD_WS, P_WS, WS_USED)
    sk = e.lab("clr")
    e(f"""s_cmp_lg_u32 s{S_WAVE}, 0
          s_cbranch_scc1 {sk}
          v_lshl_add_u32 v2, v1, 2, v{V_FLAG}
          v_mov_b32 v3, 0
          s_mov_b64 exec, 0xff
          buffer_store_dword v3, v2, {srd(SRD_WS)}, 0 offen sc1
          s_mov_b64 exec, -1
          {sk}:""")
    mk_srd(e, SRD_K, P_K, S * D * 2)
    mk_srd(e, SRD_V, P_V, S * D * 2)
    mk_srd(e, SRD_X, P_Q, S * D * 2)
    mk_srd(e, SRD_W1, P_W1, D * F * 2)
    mk_srd(e, SRD_OUT, P_OUT, S * D * 2)
    mk_srd(e, SRD_DBG, P_DBG, 256)
    e(f"s_mov_b32 s{S_SPIN}, 0")
    if OPT["stamps"]:
        e(f"s_memrealtime s[44:45]\ns_waitcnt lgkmcnt(0)\nv_writelane_b32 v{V_STAMP}, s44, 62\nv_writelane_b32 v{V_STAMP}, s68, 61")
    k.stamp("prologue")


def arrive(k):
    e = k.e
    sk = e.lab("arr")
    e(f"""s_cmp_lg_u32 s{S_WAVE}, 0
          s_cbranch_scc1 {sk}
          s_and_b32 s6, s2, 7
          s_lshl_b32 s6, s6, 5
          v_mov_b32 v2, s6
          s_mov_b64 exec, 1
          buffer_atomic_add v{V_ONE}, v2, {srd(SRD_DBG)}, 0 offen sc1
          s_mov_b64 exec, -1
          {sk}:""")


def ids(k):
    e = k.e
    e(f"""s_lshr_b32 s6, s{S_XCD}, 1
          s_lshl_b32 s6, s6, 2
          s_and_b32 s7, s{S_SLOT}, 3
          s_add_u32 s77, s6, s7
          s_and_b32 s6, s{S_XCD}, 1
          s_mul_i32 s6, s6, 7
          s_lshr_b32 s7, s{S_SLOT}, 2
          s_add_u32 s78, s6, s7
          s_and_b32 s82, s{S_WAVE}, 1
          s_lshr_b32 s83, s{S_WAVE}, 1
          s_lshl_b32 s6, s{S_XCD}, 4
          s_lshr_b32 s7, s{S_SLOT}, 1
          s_add_u32 s6, s6, s7
          s_mul_i32 s6, s6, 5
          s_and_b32 s89, s{S_SLOT}, 1
          s_lshl_b32 s7, s89, 1
          s_add_u32 s88, s6, s7
          s_lshr_b32 s6, s{S_XCD}, 1
          s_lshl_b32 s6, s6, 3
          s_and_b32 s7, s{S_SLOT}, 7
          s_add_u32 s94, s6, s7
          s_and_b32 s6, s{S_XCD}, 1
          s_lshl_b32 s6, s6, 2
          s_lshr_b32 s7, s{S_SLOT}, 3
          s_add_u32 s95, s6, s7
          s_mul_i32 s96, s{S_WAVE}, 14
          s_cmp_eq_u32 s{S_WAVE}, 3
          s_cselect_b32 s6, 1, 0
          s_sub_u32 s96, s96, s6""")


def poll_addrs(k):
    e = k.e
    e(f"""v_min_u32 v2, 53, v1
          v_lshlrev_b32 v2, 2, v2
          s_lshr_b32 s43, s95, 1
          v_add_u32 v2, s43, v2
          v_lshlrev_b32 v2, 7, v2
          v_add_u32 v{V_PA1}, {FL_KV}, v2
          s_lshl_b32 s6, s77, 1
          v_and_b32 v4, 1, v1
          v_add_u32 v4, s6, v4
          v_and_b32 v5, 3, v4
          v_add_u32 v5, 28, v5
          v_lshrrev_b32 v4, 2, v4
          v_lshl_add_u32 v4, v5, 3, v4
          v_lshlrev_b32 v4, 7, v4
          v_add_u32 v{V_PST}, {FL_ST}, v4
          v_and_b32 v2, 31, v1
          v_and_b32 v3, 7, v2
          v_lshrrev_b32 v2, 3, v2
          v_lshlrev_b32 v2, 3, v2
          v_add_u32 v2, s{S_XCD}, v2
          v_lshl_add_u32 v2, v2, 3, v3
          v_lshlrev_b32 v{V_PA2}, 7, v2
          v_cmp_gt_u32 vcc, 14, v1
          v_cndmask_b32 v2, 0, v1, vcc
          v_cmp_lt_u32 vcc, 6, v2
          v_cndmask_b32 v3, 0, 1, vcc
          v_mul_u32_u24 v4, 7, v3
          v_sub_u32 v2, v2, v4
          s_lshr_b32 s6, s94, 1
          s_and_b32 s7, s6, 3
          s_lshr_b32 s6, s6, 2
          s_lshl_b32 s6, s6, 1
          v_lshlrev_b32 v2, 2, v2
          v_add_u32 v2, s7, v2
          v_add_u32 v3, s6, v3
          v_lshl_add_u32 v2, v2, 3, v3
          v_lshlrev_b32 v2, 7, v2
          v_add_u32 v{V_PA3}, {FL_H}, v2
          v_and_b32 v2, 31, v1
          v_lshlrev_b32 v2, 3, v2
          v_add_u32 v2, s95, v2
          v_lshlrev_b32 v2, 7, v2
          v_add_u32 v{V_PA4}, {FL_Y}, v2
          v_mov_b32 v2, {OOB}
          s_cmp_lg_u32 s{S_WAVE}, 0
          s_cselect_b64 vcc, -1, 0
          v_cndmask_b32 v{V_PA1}, v{V_PA1}, v2, vcc
          v_cndmask_b32 v{V_PA2}, v{V_PA2}, v2, vcc
          v_cndmask_b32 v{V_PST}, v{V_PST}, v2, vcc
          v_cndmask_b32 v{V_PCNT}, v{V_PCNT}, v2, vcc""")


P0_K, P0_V, P0_SK, P0_T, P0_KF, P0_VF, P0_R = 8, 36, 52, 68, 100, 114, 122
P0_SA = 172


def NT():
    return " nt" if OPT["nt"] else ""


def NTG():
    return "" if OPT["pf"] else NT()


def p0_loads(k, deferred=False):
    e = k.e
    A4, A5, A6 = (226, 227, 213) if deferred else (4, 5, 6)
    mk_srd(e, SRD_T0, P_SHK, D * 4 * 2)
    e(f"""s_lshr_b32 s6, s{S_SLOT}, 3
          s_lshl_b32 s7, s{S_XCD}, 2
          s_add_u32 s68, s6, s7
          s_and_b32 s69, s{S_SLOT}, 7
          v_mul_u32_u24 v2, 26, v1
          v_lshrrev_b32 v2, 8, v2
          v_mul_u32_u24 v3, 10, v2
          v_sub_u32 v3, v1, v3
          s_lshl_b32 s6, s68, 6
          s_lshl_b32 s7, s{S_WAVE}, 4
          s_add_u32 s6, s6, s7
          s_mul_i32 s6, s6, 1280
          s_mul_i32 s7, s69, 160
          s_add_u32 s6, s6, s7
          v_mul_u32_u24 v4, 5120, v2
          v_lshl_add_u32 v4, v3, 4, v4
          v_add_u32 v{A4}, s6, v4
          v_subrev_u32 v{A5}, 3840, v{A4}
          s_mul_i32 s7, s69, 640
          v_lshlrev_b32 v6, 6, v3
          v_add_u32 v{A6}, s7, v6""")
    items = []
    for r in range(3):
        items.append((f"buffer_load_dwordx4 {vr(P0_K+4*r,4)}, v{A5}, {srd(SRD_K)}, 0 offen offset:{1280*r}{NT()}", "p0k"))
    for r in range(4):
        items.append((f"buffer_load_dwordx4 {vr(P0_K+12+4*r,4)}, v{A4}, {srd(SRD_K)}, 0 offen offset:{1280*r}{NT()}", "p0k"))
    for r in range(4):
        items.append((f"buffer_load_dwordx4 {vr(P0_SK+4*r,4)}, v{A6}, {srd(SRD_T0)}, 0 offen offset:{16*r}", "p0s"))
    for r in range(4):
        items.append((f"buffer_load_dwordx4 {vr(P0_V+4*r,4)}, v{A4}, {srd(SRD_V)}, 0 offen offset:{1280*r}{NT()}", "p0v"))
    tailtxt = f"""s_lshl_b32 s7, s{S_WAVE}, 5
          s_sub_u32 s7, {LDS_P0 + 120}, s7
          v_mul_u32_u24 v7, 1152, v3
          v_lshlrev_b32 v2, 3, v2
          v_sub_u32 v7, v7, v2
          v_add_u32 v7, s7, v7"""
    if deferred:
        e(tailtxt)
        e(f"""v_mov_b32 v2, {OOB}
              v_cmp_lt_u32 vcc, 39, v1
              v_cndmask_b32 v{A4}, v{A4}, v2, vcc
              v_cndmask_b32 v{A5}, v{A5}, v2, vcc
              v_cndmask_b32 v{A6}, v{A6}, v2, vcc""")
        return items
    e("s_mov_b32 exec_hi, 0xff")
    for it in items:
        emit_fill(k, it)
    e(tailtxt)
    e("s_mov_b64 exec, -1")


LDS_W2U = LDS_P0 + 11520


def w2u_dma_items(k):
    e = k.e
    mk_srd(e, SRD_T1, P_W2, F * D * 2)
    e(f"""s_lshr_b32 s6, s2, 2
          s_lshl_b32 s6, s6, 5
          s_lshl_b32 s7, s{S_WAVE}, 3
          s_add_u32 s6, s6, s7
          s_mul_i32 s6, s6, 1280
          s_and_b32 s7, s2, 3
          s_mul_i32 s7, s7, 320
          s_add_u32 s6, s6, s7
          s_cmp_lt_u32 s2, 216
          s_cselect_b32 s6, s6, {OOB}""")
    for i in range(3):
        e(f"""v_add_u32 v2, {64*i}, v1
              v_mul_u32_u24 v3, 205, v2
              v_lshrrev_b32 v3, 12, v3
              v_mul_u32_u24 v4, 20, v3
              v_sub_u32 v2, v2, v4
              v_mul_u32_u24 v3, 1280, v3
              v_lshl_add_u32 v2, v2, 4, v3
              v_add_u32 v2, s6, v2
              v_subrev_u32 v{204+i}, {1024*i}, v2""")
    e(f"""s_mul_i32 s6, s{S_WAVE}, 2560
          s_add_u32 s74, s6, {LDS_W2U}""")
    return [("s_mov_b32 m0, s74", None), ("s_nop 0", None),
            (f"buffer_load_dwordx4 v204, {srd(SRD_T1)}, 0 offen{NT()} lds", "w2u"),
            (f"buffer_load_dwordx4 v205, {srd(SRD_T1)}, 0 offen offset:1024{NT()} lds", "w2u"),
            (f"s_mov_b32 exec_hi, 0\nbuffer_load_dwordx4 v206, {srd(SRD_T1)}, 0 offen offset:2048{NT()} lds\ns_mov_b64 exec, -1", "w2u")]


def w2u_setup(k):
    k.e(f"""v_lshrrev_b32 v2, 4, v1
          v_bfe_u32 v3, v1, 2, 2
          v_lshrrev_b32 v4, 1, v2
          v_lshlrev_b32 v4, 4, v4
          v_and_b32 v2, 1, v2
          v_lshl_add_u32 v2, v2, 2, v3
          v_add_u32 v2, v2, v4
          v_mul_u32_u24 v2, 320, v2
          v_and_b32 v3, 3, v1
          v_mul_u32_u24 v3, 40, v3
          v_add_u32 v2, v2, v3
          v_add_u32 v204, {LDS_W2U}, v2
          s_and_b32 s6, s2, 3
          s_lshl_b32 s6, s6, 1
          s_mul_i32 s6, s6, 54
          s_lshr_b32 s7, s2, 2
          s_add_u32 s6, s6, s7
          s_mul_i32 s74, s6, 5120
          s_add_u32 s74, s74, {WS_W2F}
          v_mov_b32 v205, {OOB}
          s_cmp_lt_u32 s2, 216
          s_cselect_b64 vcc, -1, 0
          v_cndmask_b32 v205, v205, v{V_L16}, vcc""")


W2U_S = (75, 76, 93)


def w2u_block(k, m, dst):
    so = W2U_S[m]
    k.e(f"""s_add_u32 s6, s{S_WAVE}, {4*m}
          s_cmp_ge_u32 s6, 5
          s_cselect_b32 s7, 5, 0
          s_cselect_b32 s43, {54*5120}, 0
          s_cselect_b32 s{so}, 160, 0
          s_sub_u32 s6, s6, s7
          s_lshl_b32 s7, s6, 3
          s_add_u32 s{so}, s{so}, s7
          v_add_u32 v2, s{so}, v204
          s_lshl_b32 s6, s6, 10
          s_add_u32 s6, s6, s43
          s_add_u32 s{so}, s6, s74
          ds_read_b64_tr_b16 v[{dst}:{dst+1}], v2
          ds_read_b64_tr_b16 v[{dst+2}:{dst+3}], v2 offset:2560""")


def p0_compute(k, first_wait_hook=None, fills=(), w2u=False):
    e = k.e
    K_, V_, SK, T, KF, VF, R = P0_K, P0_V, P0_SK, P0_T, P0_KF, P0_VF, P0_R
    fills = list(fills)
    k.stamp("p0 before wait")
    k.vq.need("p0s")
    k.stamp("p0s landed")
    if first_wait_hook:
        first_wait_hook()
    n = 0
    for j in range(4):
        for tap in range(4):
            for h in range(2):
                src = SK + 4 * j + 2 * h + (tap >> 1)
                dst = T + (tap * 4 + j) * 2 + h
                if tap & 1:
                    e(f"v_and_b32 v{dst}, 0xffff0000, v{src}")
                else:
                    e(f"v_lshlrev_b32 v{dst}, 16, v{src}")
                n += 1
                if n % OPT["p0sp"] == 0:
                    pop_vmem(k, fills)
    k.vq.need("p0v")
    k.stamp("p0v landed")
    cnt = [0]

    def c(x):
        e(x)
        cnt[0] += 1
        if cnt[0] % OPT["p0sp"] == 0:
            pop_vmem(k, fills)
    for j in range(4):
        for r in range(7):
            c(f"v_lshlrev_b32 v{KF+2*r}, 16, v{K_+4*r+j}")
            c(f"v_and_b32 v{KF+2*r+1}, 0xffff0000, v{K_+4*r+j}")
        for r in range(4):
            c(f"v_lshlrev_b32 v{VF+2*r}, 16, v{V_+4*r+j}")
            c(f"v_and_b32 v{VF+2*r+1}, 0xffff0000, v{V_+4*r+j}")
        for i in range(4):
            c(f"v_pk_mul_f32 {vr(R+2*i,2)}, {vr(KF+2*(i+3),2)}, {vr(T+(0*4+j)*2,2)}")
        for tap in range(1, 4):
            for i in range(4):
                c(f"v_pk_fma_f32 {vr(R+2*i,2)}, {vr(KF+2*(i+3-tap),2)}, {vr(T+(tap*4+j)*2,2)}, {vr(R+2*i,2)}")
        for i in range(4):
            c(f"v_pk_mul_f32 {vr(R+2*i,2)}, {vr(R+2*i,2)}, {vr(VF+2*i,2)}")
        e("s_mov_b32 exec_hi, 0xff")
        for h in range(2):
            e(f"v_cvt_pk_bf16_f32 v{KF+2*h}, v{R+6+h}, v{R+4+h}")
            e(f"v_cvt_pk_bf16_f32 v{KF+2*h+1}, v{R+2+h}, v{R+h}")
            e(f"ds_write_b64 v7, {vr(KF+2*h,2)} offset:{(2*j+h)*144}")
        e("s_mov_b64 exec, -1")
    while fills:
        emit_fill(k, fills.pop(0))
    if w2u:
        w2u_setup(k)
    e(f"""v_lshrrev_b32 v2, 3, v1
          s_mul_i32 s6, s{S_WAVE}, 20
          v_add_u32 v2, s6, v2
          v_and_b32 v3, 7, v1
          v_lshlrev_b32 v3, 4, v3
          v_mul_u32_u24 v4, 144, v2
          v_add_u32 v4, v4, v3
          v_add_u32 v4, {LDS_P0}, v4
          v_lshl_add_u32 v5, v2, 12, v3
          s_mul_i32 s6, s69, {80*4096}
          s_lshl_b32 s7, s68, 7
          s_sub_u32 s6, s6, s7
          s_add_u32 s70, s6, {WS_XR + 1984*2}
          s_add_u32 s71, s70, {8*4096}
          s_add_u32 s72, s70, {16*4096}""")
    if w2u:
        k.vq.need("w2u")
    e("s_waitcnt lgkmcnt(0)")
    k.stamp("p0 compute done")
    e(f"""s_barrier
          ds_read_b128 v[8:11], v4
          ds_read_b128 v[12:15], v4 offset:1152
          ds_read_b128 v[16:19], v4 offset:2304""")
    if w2u:
        w2u_block(k, 0, 20)
        w2u_block(k, 1, 24)
        w2u_block(k, 2, 28)
        e(f"""v_mov_b32 v{P0_SA}, v5
              s_cmp_ge_u32 s{S_WAVE}, 2
              s_cselect_b64 vcc, -1, 0
              v_mov_b32 v3, {OOB}
              v_cndmask_b32 v{P0_SA+1}, v205, v3, vcc""")
        return [(f"buffer_store_dwordx4 v[8:11], v{P0_SA}, {srd(SRD_WS)}, s70 offen sc1", "kvst"),
                (f"buffer_store_dwordx4 v[12:15], v{P0_SA}, {srd(SRD_WS)}, s71 offen sc1", "kvst"),
                (f"s_mov_b32 exec_hi, 0\nbuffer_store_dwordx4 v[16:19], v{P0_SA}, {srd(SRD_WS)}, s72 offen sc1\ns_mov_b64 exec, -1", "kvst"),
                (f"buffer_store_dwordx4 v[20:23], v205, {srd(SRD_WS)}, s{W2U_S[0]} offen sc1", "kvst"),
                (f"buffer_store_dwordx4 v[24:27], v205, {srd(SRD_WS)}, s{W2U_S[1]} offen sc1", "kvst"),
                (f"buffer_store_dwordx4 v[28:31], v{P0_SA+1}, {srd(SRD_WS)}, s{W2U_S[2]} offen sc1", "kvst")]
    e("s_waitcnt lgkmcnt(2)")
    k.vm(f"buffer_store_dwordx4 v[8:11], v5, {srd(SRD_WS)}, s70 offen sc1", "kvst")
    e("s_waitcnt lgkmcnt(1)")
    k.vm(f"buffer_store_dwordx4 v[12:15], v5, {srd(SRD_WS)}, s71 offen sc1", "kvst")
    e("s_waitcnt lgkmcnt(0)\ns_mov_b32 exec_hi, 0")
    k.vm(f"buffer_store_dwordx4 v[16:19], v5, {srd(SRD_WS)}, s72 offen sc1", "kvst")
    e("s_mov_b64 exec, -1")


G1_VW, G1_VX, G1_VA, G1_VB = 208, 212, 216, 220
G1_ACC, G1_P, G1_Qs = 64, 128, 144
G1_SEL, G1_CS = 160, 164


def g1_setup_dma(k):
    e = k.e
    e(f"""s_lshl_b32 s79, s78, 8
          s_mul_i32 s80, s77, {128*1280}
          s_lshl_b32 s81, s{S_WAVE}, 12
          v_lshrrev_b32 v2, 4, v1
          v_and_b32 v3, 15, v1
          v_lshlrev_b32 v4, 2, v2
          v_xor_b32 v4, v3, v4
          s_lshl_b32 s6, s{S_WAVE}, 4
          v_add_u32 v5, s6, v2
          v_mul_u32_u24 v5, 3456, v5
          v_lshl_add_u32 v{G1_VW}, v4, 4, v5
          s_cmp_eq_u32 s78, 13
          s_cselect_b32 s7, 8, 16
          v_cmp_le_u32 vcc, s7, v4
          v_mov_b32 v6, {OOB}
          v_cndmask_b32 v{G1_VW}, v{G1_VW}, v6, vcc""")
    for j in range(1, 4):
        e(f"v_add_u32 v{G1_VW+j}, {j*(4*3456-1024)}, v{G1_VW}")
    e(f"""v_lshrrev_b32 v4, 3, v1
          v_and_b32 v5, 7, v1
          s_lshl_b32 s6, s{S_WAVE}, 5
          v_add_u32 v4, s6, v4
          v_mul_u32_u24 v4, 1280, v4""")
    for j in range(4):
        e(f"""v_add_u32 v6, {4*(j&1)}, v2
              v_xor_b32 v6, v5, v6
              v_lshl_add_u32 v6, v6, 4, v4
              v_add_u32 v{G1_VX+j}, {j*(8*1280-1024)}, v6""")


def g1_setup_rd(k):
    e = k.e
    e(f"""v_lshrrev_b32 v2, 4, v1
          v_bfe_u32 v4, v1, 2, 2
          v_and_b32 v5, 3, v1
          v_lshrrev_b32 v6, 5, v1
          v_lshl_add_u32 v6, v6, 3, v4
          v_lshlrev_b32 v6, 8, v6
          s_lshl_b32 s6, s82, 1
          v_xor_b32 v4, s6, v4
          v_lshlrev_b32 v4, 2, v4
          v_and_b32 v3, 1, v2
          v_lshl_or_b32 v4, v3, 1, v4
          v_lshrrev_b32 v3, 1, v5
          v_or_b32 v4, v4, v3
          v_lshl_add_u32 v6, v4, 4, v6
          v_and_b32 v5, 1, v5
          v_lshl_add_u32 v{G1_VA}, v5, 3, v6
          v_xor_b32 v{G1_VA+1}, 64, v{G1_VA}
          v_add_u32 v{G1_VA+2}, 0x10000, v{G1_VA}
          v_add_u32 v{G1_VA+3}, 0x10000, v{G1_VA+1}
          v_and_b32 v4, 31, v1
          v_bfe_u32 v5, v1, 1, 3
          v_lshrrev_b32 v6, 5, v1
          v_xor_b32 v5, v5, v6
          s_lshl_b32 s6, s83, 6
          v_add_u32 v4, s6, v4
          v_lshlrev_b32 v4, 7, v4
          v_lshl_add_u32 v{G1_VB}, v5, 4, v4""")
    for ks in range(1, 4):
        e(f"v_xor_b32 v{G1_VB+ks}, {32*ks}, v{G1_VB}")
    for ks in range(4):
        e(f"v_add_u32 v{G1_VB+4+ks}, 0x10000, v{G1_VB+ks}")


PF_W, PF_X, PF_D = 232, 233, 234


def pf_setup(k):
    k.e(f"""s_lshl_b32 s6, s{S_SLOT}, 2
          s_add_u32 s6, s6, s{S_WAVE}
          s_lshl_b32 s7, s6, 3
          v_and_b32 v2, 7, v1
          v_add_u32 v2, s7, v2
          v_lshrrev_b32 v3, 3, v1
          v_mul_u32_u24 v4, 4682, v2
          v_lshrrev_b32 v4, 16, v4
          v_mul_u32_u24 v5, 14, v4
          v_sub_u32 v5, v2, v5
          v_lshl_add_u32 v4, v3, 6, v4
          v_mul_u32_u24 v4, 3456, v4
          v_lshl_add_u32 v4, v5, 7, v4
          s_and_b32 s7, s{S_XCD}, 1
          s_mul_i32 s43, s7, 1792
          v_add_u32 v4, s43, v4
          s_sub_u32 s7, 13, s7
          v_mov_b32 v6, {OOB}
          v_cmp_lt_u32 vcc, s7, v5
          v_cndmask_b32 v{PF_W}, v4, v6, vcc
          s_lshr_b32 s7, s{S_XCD}, 1
          s_mul_i32 s7, s7, {512*1280}
          s_mul_i32 s6, s6, {46*128}
          s_add_u32 s7, s7, s6
          v_lshlrev_b32 v2, 7, v1
          v_add_u32 v2, s7, v2
          v_cmp_gt_u32 vcc, 46, v1
          v_cndmask_b32 v{PF_X}, v6, v2, vcc
          s_mov_b32 s41, {8*64*3456}""")


def pf_x_items():
    nt = NT() if OPT["pfnt"] else ""
    return [(f"buffer_load_dword v{PF_D+1}, v{PF_X}, {srd(SRD_X)}, 0 offen{nt}", "pf")]


def pf_items(slabs):
    hi = slabs[0] >= 8
    mask = 0
    for q in slabs:
        mask |= 0xff << (8 * (q & 7))
    pre = [f"s_mov_b32 exec_lo, 0x{mask & 0xffffffff:x}", f"s_mov_b32 exec_hi, 0x{mask >> 32:x}"]
    so = "s41" if hi else "0"
    nt = NT() if OPT["pfnt"] else ""
    a = f"buffer_load_dword v{PF_D}, v{PF_W}, {srd(SRD_W1)}, {so} offen{nt}"
    return [("\n".join(pre + [a, "s_mov_b64 exec, -1"]), "pf")]


def g1_dma(slab):
    slot = slab % 4
    tag = f"s{slab}"
    out = [(f"s_add_u32 m0, s81, {slot*32768}", None)]
    out.append((f"s_add_u32 s79, s79, {64*3456}" if slab else "s_nop 0", None))
    for j in range(4):
        out.append((f"buffer_load_dwordx4 v{G1_VW+j}, {srd(SRD_W1)}, s79 offen offset:{1024*j}{NTG()} lds", tag))
    out.append((f"s_add_u32 m0, s81, {slot*32768+16384}", None))
    out.append(("s_add_u32 s80, s80, 128" if slab else "s_nop 0", None))
    for j in range(4):
        out.append((f"buffer_load_dwordx4 v{G1_VX+j}, {srd(SRD_X)}, s80 offen offset:{1024*j}{NTG()} lds", tag))
    return out


def g1_reads(slab, ks, fs):
    slot = slab % 4
    hi = slot >= 2
    so = (slot & 1) * 32768
    va = G1_VA + (2 if hi else 0)
    vb = G1_VB + (4 if hi else 0) + ks
    return [("A0", f"ds_read_b64_tr_b16 {vr(fs,2)}, v{va} offset:{so+ks*4096}"),
            ("A0", f"ds_read_b64_tr_b16 {vr(fs+2,2)}, v{va} offset:{so+ks*4096+1024}"),
            ("B0", f"ds_read_b128 {vr(fs+8,4)}, v{vb} offset:{so+16384}"),
            ("B1", f"ds_read_b128 {vr(fs+12,4)}, v{vb} offset:{so+16384+4096}"),
            ("A1", f"ds_read_b64_tr_b16 {vr(fs+4,2)}, v{va+1} offset:{so+ks*4096}"),
            ("A1", f"ds_read_b64_tr_b16 {vr(fs+6,2)}, v{va+1} offset:{so+ks*4096+1024}")]


def emit_fill(k, item):
    x, tag = item
    k.e(x)
    if isinstance(tag, tuple):
        for t in tag:
            k.vq.issue(t)
    elif tag is not None:
        k.vq.issue(tag)


def pop_vmem(k, fills):
    while fills:
        it = fills.pop(0)
        emit_fill(k, it)
        if it[1] is not None:
            break
    while fills and fills[0][1] is None and "exec, -1" in fills[0][0]:
        emit_fill(k, fills.pop(0))


def g1_main(k, pre, post, fills):
    e = k.e
    lq = Q(e, "lgkmcnt", 15)
    sets = [G1_P, G1_Qs]
    steps = [(sl, ks) for sl in range(10) for ks in range(4)]

    def group(cur, nxt, fill):
        rd = []
        if nxt is not None:
            n = steps.index(nxt)
            rd = [(f"{t}_{n}", x) for t, x in g1_reads(nxt[0], nxt[1], sets[n & 1])]
        fill = list(fill)
        if cur is None:
            for t, x in rd:
                e(x); lq.issue(t)
            for x in fill:
                emit_fill(k, x)
            return
        c = steps.index(cur)
        fs = sets[c & 1]
        order = [(0, 0, ("A0", "B0")), (0, 1, ("B1",)), (1, 0, ("A1",)), (1, 1, ())]
        per_r = [2, 2, 2, 0]
        nf = len(fill)
        per_f = [(nf * (m + 1)) // 4 - (nf * m) // 4 for m in range(4)]
        for m, (ft, st, nd) in enumerate(order):
            if nd:
                lq.need(*[f"{t}_{c}" for t in nd])
            acc = G1_ACC + (ft * 2 + st) * 16
            e(f"v_mfma_f32_32x32x16_bf16 {vr(acc,16)}, {vr(fs+4*ft,4)}, {vr(fs+8+4*st,4)}, {vr(acc,16)}")
            if st == 1:
                e(f"v_mfma_f32_16x16x32_bf16 {vr(G1_CS+4*ft,4)}, {vr(G1_SEL,4)}, {vr(fs+4*ft,4)}, {vr(G1_CS+4*ft,4)}")
            for _ in range(per_r[m]):
                if rd:
                    t, x = rd.pop(0); e(x); lq.issue(t)
            for _ in range(per_f[m]):
                emit_fill(k, fill.pop(0))

    for sl in range(10):
        lq.drain()
        if OPT["stamps"] > 2:
            k.stamp(f"g1 it{sl} top")
        k.vq.need(f"s{sl}")
        if OPT["stamps"] > 2:
            k.stamp(f"g1 it{sl} landed")
        if sl in pre:
            pre[sl]()
        e("s_barrier")
        if OPT["stamps"] > 1:
            k.stamp(f"g1 it{sl}")
        if sl in post:
            post[sl]()
        dma = g1_dma(sl + 3) if 3 < sl + 3 < 10 else []
        parts = [dma[0:4], dma[4:6], dma[6:10], dma[10:12]] if dma else [[], [], [], []]
        group((sl - 1, 3) if sl else None, (sl, 0), parts[0] + fills.get((sl, -1), []))
        for ks in range(3):
            group((sl, ks), (sl, ks + 1), parts[ks + 1] + fills.get((sl, ks), []))
    group((9, 3), None, fills.get((9, 3), []))


def g1_cs_init(k):
    k.e(f"""v_and_b32 v2, 15, v1
          v_bfe_u32 v3, v1, 4, 1
          v_lshlrev_b32 v3, 2, v3
          v_cmp_eq_u32 vcc, v2, v3
          v_mov_b32 v2, 0x3f803f80
          v_cndmask_b32 v{G1_SEL}, 0, v2, vcc""")
    for i in range(1, 4):
        k.e(f"v_mov_b32 v{G1_SEL+i}, v{G1_SEL}")
    for i in range(8):
        k.e(f"v_mov_b32 v{G1_CS+i}, 0")


def g1_epi_loads(k):
    e = k.e
    mk_srd(e, SRD_T1, P_B1, F * 2)
    e(f"""v_and_b32 v2, 31, v1
          s_lshl_b32 s6, s78, 7
          s_lshl_b32 s7, s82, 6
          s_add_u32 s6, s6, s7
          v_add_u32 v3, s6, v2
          v_lshlrev_b32 v3, 1, v3
          s_cmp_ge_u32 s6, {F}
          s_cselect_b32 s101, 0, 32
          s_lshl_b32 s6, s77, 7
          s_lshl_b32 s7, s83, 6
          s_add_u32 s6, s6, s7
          v_add_u32 v4, s6, v2
          v_lshlrev_b32 v4, 4, v4
          v_mov_b32 v5, {OOB}
          v_cmp_gt_u32 vcc, 32, v1
          v_cndmask_b32 v3, v5, v3, vcc
          v_cndmask_b32 v5, v5, v4, vcc
          s_mov_b32 s7, {WS_STAT16}
          s_mov_b32 s84, {WS_STATF}""")
    k.vm(f"""buffer_load_ushort v28, v3, {srd(SRD_T1)}, 0 offen
          buffer_load_ushort v32, v3, {srd(SRD_T1)}, 0 offen offset:64
          buffer_load_dwordx4 v[36:39], v5, {srd(SRD_WS)}, s7 offen
          buffer_load_dwordx4 v[40:43], v5, {srd(SRD_WS)}, s7 offen offset:512
          buffer_load_dwordx4 v[44:47], v4, {srd(SRD_WS)}, s84 offen
          buffer_load_dwordx4 v[48:51], v4, {srd(SRD_WS)}, s84 offen offset:512""", "epi")


def g1_epilogue(k, hooks):
    e = k.e
    k.vq.need("epi")
    e("s_nop 7")
    for ft in range(2):
        a, c = 28 + 4 * ft, G1_CS + 4 * ft
        e(f"""v_lshl_or_b32 v{a}, v{a}, 16, v{a}
              v_cvt_pk_bf16_f32 v{a+1}, v{c}, v{c}
              v_lshlrev_b32 v2, 16, v{a+1}
              v_sub_f32 v2, v{c}, v2
              v_cvt_pk_bf16_f32 v{a+2}, v2, v2
              v_mov_b32 v{a+3}, 0""")
    e("s_nop 1")
    for ft in range(2):
        for st in range(2):
            acc = G1_ACC + (ft * 2 + st) * 16
            e(f"v_mfma_f32_32x32x16_bf16 {vr(acc,16)}, {vr(28+4*ft,4)}, {vr(36+4*st,4)}, {vr(acc,16)}")
    for st in range(2):
        r, sg = 45 + 4 * st, 46 + 4 * st
        e(f"""v_mul_f32 v{52+4*st}, {GELU_K0!r}, v{r}
              v_mul_f32 v2, v{r}, v{r}
              v_mul_f32 v2, v2, v{r}
              v_mul_f32 v{53+4*st}, {GELU_K1!r}, v2
              v_mov_b32 v{54+4*st}, v{sg}
              v_mov_b32 v{55+4*st}, v{sg}""")
    e(f"""v_and_b32 v2, 15, v1
          v_lshrrev_b32 v3, 3, v2
          v_lshlrev_b32 v3, 3, v3
          v_and_b32 v4, 1, v2
          v_lshl_or_b32 v3, v4, 2, v3
          v_bfe_u32 v4, v2, 1, 2
          v_or_b32 v3, v3, v4
          v_lshlrev_b32 v3, 4, v3
          v_bfe_u32 v4, v1, 4, 1
          v_lshl_or_b32 v3, v4, 10, v3
          v_lshrrev_b32 v4, 5, v1
          v_lshl_or_b32 v3, v4, 8, v3
          v_mov_b32 v4, {OOB}
          s_cmp_eq_u32 s101, 0
          s_cselect_b64 vcc, -1, 0
          v_cndmask_b32 v60, v3, v4, vcc
          s_lshl_b32 s6, s77, 1
          s_add_u32 s6, s6, s83
          s_mul_i32 s6, s6, 54
          s_lshl_b32 s7, s78, 2
          s_add_u32 s6, s6, s7
          s_lshl_b32 s7, s82, 1
          s_add_u32 s6, s6, s7
          s_lshl_b32 s6, s6, 12
          s_add_u32 s100, s6, {WS_HF}
          s_add_u32 s101, s100, 4096""")
    T = 160
    g = 0
    pend = []
    for ft in range(2):
        for st in range(2):
            acc = G1_ACC + (ft * 2 + st) * 16
            KK, SS = vr(52 + 4 * st, 2), vr(54 + 4 * st, 2)
            for u in range(2):
                if g in hooks:
                    hooks[g]()
                z = [acc + 8 * u + 2 * p for p in range(4)]
                t = [T + 2 * p for p in range(4)]
                for p in range(4):
                    e(f"v_pk_mul_f32 {vr(t[p],2)}, {vr(z[p],2)}, {vr(z[p],2)}")
                for p in range(4):
                    e(f"v_pk_fma_f32 {vr(t[p],2)}, {vr(t[p],2)}, {KK}, {KK} op_sel:[0,1,0] op_sel_hi:[1,1,0]")
                for p in range(4):
                    e(f"v_pk_mul_f32 {vr(t[p],2)}, {vr(t[p],2)}, {vr(z[p],2)}")
                for p in range(4):
                    e(f"v_exp_f32 v{t[p]}, v{t[p]}\nv_exp_f32 v{t[p]+1}, v{t[p]+1}")
                for p in range(4):
                    e(f"v_pk_fma_f32 {vr(t[p],2)}, {vr(t[p],2)}, {SS}, {SS}")
                for p in range(4):
                    e(f"v_rcp_f32 v{t[p]}, v{t[p]}\nv_rcp_f32 v{t[p]+1}, v{t[p]+1}")
                for p in range(4):
                    e(f"v_pk_mul_f32 {vr(t[p],2)}, {vr(t[p],2)}, {vr(z[p],2)}")
                o = acc + 8 * u
                for p in range(4):
                    e(f"v_cvt_pk_bf16_f32 v{o+p}, v{t[p]}, v{t[p]+1}")
                pend.append((f"buffer_store_dwordx4 {vr(o,4)}, v60, {srd(SRD_WS)}, s{100+ft} offen offset:{st*2048+u*512} sc1", "hst"))
                if g in H_STORE_AFTER:
                    emit_fill(k, pend.pop(0))
                g += 1
    return pend


H_STORE_AFTER = (0, 2, 3, 5, 7)


CV_H, CV_HS, CV_X, CV_XS, CV_CH = 0, 4416, 17664, 6272, 30208
CV_A, CV_B, CV_ACC = 128, 160, 176
CV_XR = 32


def conv_h_setup(k):
    k.e(f"""s_lshl_b32 s6, s{S_WAVE}, 2
          v_lshlrev_b32 v202, 2, v1
          v_add_u32 v202, s6, v202
          v_subrev_u32 v202, 252, v202
          v_add_u32 v203, s6, v{V_L16}
          v_add_u32 v203, 4, v203
          s_mul_i32 s90, s{S_WAVE}, {CV_HS}""")


def conv_h_items(lc):
    it = [(f"s_add_u32 s6, s88, {lc}", None), ("s_lshl_b32 s6, s6, 12", None),
          (f"s_add_u32 s{SRD_T0}, s{P_SSMK}, s6", None), (f"s_addc_u32 s{SRD_T0+1}, s{P_SSMK+1}, 0", None),
          (f"s_and_b32 s{SRD_T0+1}, s{SRD_T0+1}, 0xffff", None), (f"s_mov_b32 s{SRD_T0+2}, 4096", None),
          (f"s_mov_b32 s{SRD_T0+3}, 0x20000", None),
          (f"s_add_u32 m0, s90, {LDS_CV + lc*CV_CH + CV_H}", None), ("s_nop 0", None),
          (f"buffer_load_dword v202, {srd(SRD_T0)}, 0 offen{NT()} lds", "H"),
          (f"s_add_u32 m0, s90, {LDS_CV + lc*CV_CH + CV_H + 256}", None), ("s_nop 0", None)]
    for j in range(4):
        it.append((f"buffer_load_dwordx4 v203, {srd(SRD_T0)}, 0 offen offset:{1024*j}{NT()} lds", "H"))
    return it


def conv_x_items():
    it = [("v_lshlrev_b32 v4, 4, v0", None)]
    for lc in range(3):
        it += [(f"s_add_u32 s6, s88, {lc}", None), ("s_lshl_b32 s6, s6, 12", None), (f"s_add_u32 s6, s6, {WS_XR}", None),
               (f"s_add_u32 s{SRD_T1}, s{P_WS}, s6", None), (f"s_addc_u32 s{SRD_T1+1}, s{P_WS+1}, 0", None),
               (f"s_and_b32 s{SRD_T1+1}, s{SRD_T1+1}, 0xffff", None), (f"s_mov_b32 s{SRD_T1+2}, 4096", None),
               (f"s_mov_b32 s{SRD_T1+3}, 0x20000", None),
               (f"buffer_load_dwordx4 {vr(CV_XR+6*lc,4)}, v4, {srd(SRD_T1)}, 0 offen", "X"),
               (f"buffer_load_dword v{CV_XR+6*lc+4}, v4, {srd(SRD_T1)}, 0 offen offset:16", "X")]
    return it


def conv_zero_tails(k):
    e = k.e
    e(f"""v_lshlrev_b32 v5, 4, v0
          v_add_u32 v5, {LDS_CV + CV_X + 16*272}, v5
          v_add_u32 v7, {2*CV_CH}, v5
          v_mov_b32 v12, 0
          v_mov_b32 v13, 0
          v_mov_b32 v14, 0
          v_mov_b32 v15, 0
          v_cmp_gt_u32 vcc, 119, v0
          s_and_saveexec_b64 s[6:7], vcc""")
    for lc in range(3):
        va, o = ("v5", lc * CV_CH) if lc < 2 else ("v7", 0)
        e(f"ds_write_b128 {va}, v[12:15] offset:{o}")
        e(f"ds_write_b128 {va}, v[12:15] offset:{o+CV_XS}")
    e("s_mov_b64 exec, s[6:7]")


def conv_xwrite(k):
    e = k.e
    e(f"""v_lshrrev_b32 v4, 4, v0
          v_mul_u32_u24 v4, 272, v4
          v_and_b32 v5, 15, v0
          v_lshl_add_u32 v4, v5, 4, v4
          v_add_u32 v4, {LDS_CV + CV_X}, v4
          v_add_u32 v6, {2*CV_CH}, v4""")
    k.vq.need("X")
    for lc in range(3):
        x = CV_XR + 6 * lc
        va, o = ("v4", lc * CV_CH) if lc < 2 else ("v6", 0)
        e(f"ds_write_b128 {va}, {vr(x,4)} offset:{o+CV_XS}")
        for d in range(4):
            e(f"v_alignbit_b32 v{12+d}, v{x+d+1}, v{x+d}, 16")
        e(f"ds_write_b128 {va}, v[12:15] offset:{o}")


def conv_lane_setup(k):
    k.e(f"""s_lshl_b32 s6, s89, 2
          s_add_u32 s6, s6, s{S_WAVE}
          s_lshl_b32 s7, s6, 1
          s_lshr_b32 s85, 6436, s7
          s_and_b32 s85, s85, 3
          s_lshr_b32 s86, 55, s6
          s_and_b32 s86, s86, 1
          s_lshr_b32 s87, 61311, s7
          s_and_b32 s87, s87, 3
          v_and_b32 v2, 3, v1
          v_mul_u32_u24 v2, {CV_HS}, v2
          v_bfe_u32 v3, v1, 2, 2
          v_lshrrev_b32 v18, 4, v1
          v_add_u32 v3, v3, v18
          v_lshl_add_u32 v16, v3, 4, v2
          v_and_b32 v2, 1, v1
          v_mul_u32_u24 v2, {CV_XS}, v2
          v_bfe_u32 v3, v1, 1, 3
          s_lshl_b32 s6, s86, 3
          s_sub_u32 s6, 15, s6
          v_sub_u32 v5, s6, v3
          v_mul_u32_u24 v5, 272, v5
          v_add_u32 v2, v2, v5
          v_lshl_add_u32 v17, v18, 4, v2
          s_lshl_b32 s6, s86, 3
          v_add_u32 v3, s6, v3
          v_lshlrev_b32 v3, 8, v3
          v_and_b32 v2, 1, v1
          v_lshl_or_b32 v2, v18, 1, v2
          v_lshl_or_b32 v11, v2, 4, v3""")


def conv_unit_addr(k, t0):
    k.e(f"""s_mul_i32 s6, s85, {CV_CH}
          s_add_u32 s6, s6, {LDS_CV - 64*t0}
          v_add_u32 v8, s6, v16
          s_add_u32 s6, s6, {CV_X + 64*t0 - (t0>>2)*272}
          v_add_u32 v9, s6, v17
          v_lshlrev_b32 v10, 5, v18
          v_sub_u32 v10, v9, v10
          v_add_u32 v10, {(t0>>2)*272}, v10
          s_add_u32 s91, s88, s85
          s_lshl_b32 s6, s91, 1
          s_and_b32 s6, s6, 0xfffffffc
          s_load_dword s92, s[{P_SSMD}:{P_SSMD+1}], s6""")


def conv_prime(k, t0):
    e = k.e
    for n in range(8):
        e(f"ds_read_b128 {vr(CV_A+4*((t0+n)&7),4)}, v8 offset:{64*(t0+n)}")
    for t in range(t0, t0 + 3):
        e(f"ds_read_b128 {vr(CV_B+4*(t&3),4)}, v9 offset:{(t>>2)*272+(t&3)*64}")
    for i in range(16):
        e(f"v_mov_b32 v{CV_ACC+i}, 0")
    e("s_waitcnt lgkmcnt(0)")


def conv_steps(k, lq, t0, t1, hooks, fills):
    e = k.e
    for t in range(t0, t1):
        if t in hooks:
            hooks[t]()
        tb = t + 3
        boff = (tb >> 2) * 272 + (tb & 3) * 64
        lq.need(f"A{t+3}", f"B{t}")
        fill = list(fills.get(t, []))
        for p in range(4):
            if t + p > 2:
                e(f"v_mfma_f32_16x16x32_bf16 {vr(CV_ACC+4*p,4)}, {vr(CV_A+4*((t+p)&7),4)}, {vr(CV_B+4*(t&3),4)}, {vr(CV_ACC+4*p,4)}")
            if p == 0:
                e(f"ds_read_b128 {vr(CV_A+4*(t&7),4)}, v8 offset:{64*(t+8)}")
                lq.issue(f"A{t+8}")
            if p == 1:
                e(f"ds_read_b128 {vr(CV_B+4*(tb&3),4)}, v9 offset:{boff}")
                lq.issue(f"B{tb}")
            if p >= 2 and fill:
                emit_fill(k, fill.pop(0))
        while fill:
            emit_fill(k, fill.pop(0))


def conv_epilogue(k):
    e = k.e
    e("s_waitcnt lgkmcnt(0)")
    for p in range(4):
        e(f"ds_read_b128 {vr(CV_A+4*p,4)}, v10 offset:{48+64*(3-p)}")
    e(f"""s_and_b32 s6, s91, 1
          s_lshl_b32 s6, s6, 4
          s_lshr_b32 s92, s92, s6
          s_lshl_b32 s92, s92, 16
          s_lshl_b32 s6, s91, 12
          s_add_u32 s6, s6, {WS_Y2}
          s_nop 4
          s_waitcnt lgkmcnt(0)""")
    for p in range(4):
        for ci in range(4):
            e(f"v_lshlrev_b32 v{CV_A+4*p+3-ci}, 16, v{CV_A+4*p+3-ci}")
            e(f"v_fma_f32 v{CV_ACC+4*p+ci}, v{CV_A+4*p+3-ci}, s92, v{CV_ACC+4*p+ci}")
    for P in range(2):
        for h in range(2):
            a = CV_ACC + 4 * (2 * P + h)
            e(f"v_cvt_pk_bf16_f32 v{CV_B+4*P+2*h}, v{a}, v{a+1}")
            e(f"v_cvt_pk_bf16_f32 v{CV_B+4*P+2*h+1}, v{a+2}, v{a+3}")
        k.vm(f"buffer_store_dwordx4 {vr(CV_B+4*P,4)}, v11, {srd(SRD_WS)}, s6 offen offset:{128*P} sc1", "yst")


G2_H, G2_ACC, G2_WV = 64, 128, 208
G2_VH = 56
G2_RED, G2_Y = 0, 61440


def g2_wreg(t, j):
    return ar(t * 20 + j * 4, 4) if t < 12 else vr(G2_WV + (t - 12) * 20 + j * 4, 4)


def g2_w2_setup(k):
    k.e(f"""s_mul_i32 s6, s95, 54
          s_add_u32 s6, s6, s96
          s_mul_i32 s97, s6, 5120
          s_add_u32 s97, s97, {WS_W2F}
          s_add_u32 s98, s97, 4096""")


def g2_w2_items():
    out = []
    for t in range(14):
        for j in range(5):
            g = []
            if j == 4:
                g.append((f"buffer_load_dwordx4 {g2_wreg(t,j)}, v{V_L16}, {srd(SRD_WS)}, s98 offen", f"w{t}"))
                g.append(("s_add_u32 s97, s97, 5120", None))
                g.append(("s_add_u32 s98, s98, 5120", None))
            else:
                g.append((f"buffer_load_dwordx4 {g2_wreg(t,j)}, v{V_L16}, {srd(SRD_WS)}, s97 offen offset:{1024*j}", f"w{t}"))
            out.append(g)
    return out


def g2_hsetup(k):
    e = k.e
    e(f"""s_mul_i32 s6, s94, 54
          s_add_u32 s6, s6, s96
          s_lshl_b32 s99, s6, 12
          s_add_u32 s99, s99, {WS_HF}""")
    for u in range(4):
        e(f"""s_add_u32 s6, s{S_WAVE}, {u}
              s_and_b32 s6, s6, 3
              s_lshl_b32 s6, s6, 10
              v_add_u32 v{G2_VH+u}, s6, v{V_L16}""")


def g2_hitems(t):
    out = [(f"buffer_load_dwordx4 {vr(G2_H+16*(t&3)+4*u,4)}, v{G2_VH+u}, {srd(SRD_WS)}, s99 offen", f"h{t}") for u in range(4)]
    out.append(("s_add_u32 s99, s99, 4096", None))
    return out


def g2_main(k, hooks):
    e = k.e
    skip = e.lab("g2skip")
    for i in range(80):
        e(f"v_mov_b32 v{G2_ACC+i}, 0")
    for t in range(14):
        if t in hooks:
            hooks[t]()
        if t == 13:
            e(f"""s_cmp_ge_u32 s{S_WAVE}, 2
                  s_cbranch_scc1 {skip}""")
        k.vq.need(f"h{t}", f"w{t}")
        fill = g2_hitems(t + 3) if t + 3 < 14 else []
        m = 0
        for j in range(5):
            for u in range(4):
                acc = G2_ACC + (u * 5 + j) * 4
                e(f"v_mfma_f32_16x16x32_bf16 {vr(acc,4)}, {g2_wreg(t,j)}, {vr(G2_H+16*(t&3)+4*u,4)}, {vr(acc,4)}")
                m += 1
                if fill and m % 4 == 1:
                    emit_fill(k, fill.pop(0))
    e(f"{skip}:")


def g2_final_loads(k):
    e = k.e
    mk_srd(e, SRD_T0, P_B2, D * 2)
    e(f"""v_and_b32 v2, 15, v1
          v_lshrrev_b32 v3, 4, v1
          v_lshrrev_b32 v4, 3, v2
          v_lshlrev_b32 v4, 3, v4
          v_and_b32 v5, 3, v2
          v_lshl_or_b32 v4, v5, 1, v4
          v_bfe_u32 v5, v2, 2, 1
          v_or_b32 v4, v4, v5
          s_lshl_b32 s6, s94, 6
          s_lshl_b32 s7, s{S_WAVE}, 4
          s_add_u32 s6, s6, s7
          v_add_u32 v4, s6, v4
          v_lshlrev_b32 v5, 4, v4
          v_mul_u32_u24 v4, 1280, v4
          v_mul_u32_u24 v3, 40, v3
          s_mul_i32 s6, s95, 160
          v_add_u32 v3, s6, v3
          v_add_u32 v60, v4, v3
          s_mov_b32 s7, {WS_STATF}""")
    k.vm(f"""buffer_load_dwordx4 v[8:11], v60, {srd(SRD_X)}, 0 offen
          buffer_load_dwordx4 v[12:15], v60, {srd(SRD_X)}, 0 offen offset:16
          buffer_load_dwordx2 v[16:17], v60, {srd(SRD_X)}, 0 offen offset:32
          buffer_load_dwordx4 v[20:23], v3, {srd(SRD_T0)}, 0 offen
          buffer_load_dwordx4 v[24:27], v3, {srd(SRD_T0)}, 0 offen offset:16
          buffer_load_dwordx2 v[28:29], v3, {srd(SRD_T0)}, 0 offen offset:32
          buffer_load_dwordx4 v[32:35], v5, {srd(SRD_WS)}, s7 offen""", "fin")


def g2_y2dma(k):
    e = k.e
    skip = e.lab("y2skip")
    e(f"""v_lshrrev_b32 v2, 3, v1
          v_and_b32 v3, 7, v1
          v_lshlrev_b32 v3, 4, v3
          v_lshl_add_u32 v61, v2, 12, v3
          s_mul_i32 s6, s95, 80
          s_lshl_b32 s7, s{S_WAVE}, 3
          s_add_u32 s6, s6, s7
          s_lshl_b32 s6, s6, 12
          s_lshl_b32 s7, s94, 7
          s_add_u32 s6, s6, s7
          s_add_u32 s6, s6, {WS_Y2}
          s_lshl_b32 s7, s{S_WAVE}, 10
          s_add_u32 s7, s7, {G2_Y}""")
    for n in range(3):
        if n == 2:
            e(f"""s_cmp_ge_u32 s{S_WAVE}, 2
                  s_cbranch_scc1 {skip}""")
        e(f"""s_mov_b32 m0, s7
              s_add_u32 s7, s7, 4096
              buffer_load_dwordx4 v61, {srd(SRD_WS)}, s6 offen lds
              s_add_u32 s6, s6, {32*4096}""")
        if n < 2:
            k.vq.issue("y2d")
    e(f"{skip}:")


def g2_reduce_final(k):
    e = k.e
    e(f"""s_mul_i32 s6, s{S_WAVE}, 15360
          s_add_u32 s6, s6, {G2_RED}
          v_add_u32 v62, s6, v{V_L16}""")
    for u in range(1, 4):
        e(f"""s_add_u32 s6, s{S_WAVE}, {u}
              s_and_b32 s6, s6, 3
              s_mul_i32 s6, s6, 15360
              s_add_u32 s6, s6, {G2_RED + (u-1)*5120}
              v_add_u32 v{G2_VH+u}, s6, v{V_L16}""")
    e("s_nop 4")
    for u in range(1, 4):
        for j in range(5):
            e(f"ds_write_b128 v{G2_VH+u}, {vr(G2_ACC+(u*5+j)*4,4)} offset:{1024*j}")
    e(f"""v_lshrrev_b32 v3, 4, v1
          v_mul_u32_u24 v3, 20, v3
          v_bfe_u32 v4, v1, 2, 2
          v_add_u32 v3, v3, v4
          v_lshlrev_b32 v3, 7, v3
          v_and_b32 v4, 3, v1
          v_lshl_add_u32 v3, v4, 4, v3
          s_and_b32 s6, s{S_WAVE}, 1
          s_lshl_b32 s6, s6, 6
          s_lshr_b32 s7, s{S_WAVE}, 1
          s_lshl_b32 s7, s7, 3
          s_add_u32 s6, s6, s7
          s_add_u32 s6, s6, {G2_Y}
          v_add_u32 v63, s6, v3
          s_waitcnt vmcnt(0) lgkmcnt(0)
          s_barrier""")
    k.vq.q = []
    k.stamp("g2 reduce barrier")
    R = G2_H
    for u in range(3):
        for j in range(5):
            e(f"ds_read_b128 {vr(R+(u*5+j)*4,4)}, v62 offset:{u*5120+1024*j}")
    for j in range(5):
        e(f"ds_read_b64_tr_b16 {vr(36+2*j,2)}, v63 offset:{512*j}")
    e(f"""v_mul_f32 v46, v32, v33
          v_sub_f32 v46, 0, v46
          v_mov_b32 v47, v33
          v_mov_b32 v48, {-1.4426950408889634!r}
          v_mov_b32 v49, 1.0""")
    for u in range(3):
        e(f"s_waitcnt lgkmcnt({min(15, 5 + 5*(2-u))})")
        for j in range(5):
            for h in range(2):
                a = G2_ACC + j * 4 + 2 * h
                e(f"v_pk_add_f32 {vr(a,2)}, {vr(a,2)}, {vr(R+(u*5+j)*4+2*h,2)}")
    e("s_waitcnt lgkmcnt(0)")
    X, B2, Y, T, O = 8, 20, 36, 64, 100
    C = "v[46:47]"
    for k0 in range(0, 10, 5):
        ks = range(k0, k0 + 5)
        a = {q: G2_ACC + 2 * q for q in ks}
        t = {q: T + 2 * (q - k0) for q in ks}
        xf = {q: T + 10 + 2 * (q - k0) for q in ks}
        yf = {q: T + 20 + 2 * (q - k0) for q in ks}
        for q in ks:
            e(f"v_lshlrev_b32 v{t[q]}, 16, v{B2+q}\nv_and_b32 v{t[q]+1}, 0xffff0000, v{B2+q}")
        for q in ks:
            e(f"v_pk_add_f32 {vr(a[q],2)}, {vr(a[q],2)}, {vr(t[q],2)}")
        for q in ks:
            e(f"v_pk_mul_f32 {vr(t[q],2)}, {vr(a[q],2)}, v[48:49] op_sel_hi:[1,0]")
        for q in ks:
            e(f"v_exp_f32 v{t[q]}, v{t[q]}\nv_exp_f32 v{t[q]+1}, v{t[q]+1}")
        for q in ks:
            e(f"v_lshlrev_b32 v{xf[q]}, 16, v{X+q}\nv_and_b32 v{xf[q]+1}, 0xffff0000, v{X+q}")
        for q in ks:
            e(f"v_pk_add_f32 {vr(t[q],2)}, {vr(t[q],2)}, v[48:49] op_sel:[0,1] op_sel_hi:[1,1]")
        for q in ks:
            e(f"v_rcp_f32 v{t[q]}, v{t[q]}\nv_rcp_f32 v{t[q]+1}, v{t[q]+1}")
        for q in ks:
            e(f"v_lshlrev_b32 v{yf[q]}, 16, v{Y+q}\nv_and_b32 v{yf[q]+1}, 0xffff0000, v{Y+q}")
        for q in ks:
            e(f"v_pk_mul_f32 {vr(t[q],2)}, {vr(t[q],2)}, {vr(a[q],2)}")
        for q in ks:
            e(f"v_pk_fma_f32 {vr(a[q],2)}, {vr(xf[q],2)}, {C}, {C} op_sel:[0,1,0] op_sel_hi:[1,1,0]")
        for q in ks:
            e(f"v_pk_mul_f32 {vr(a[q],2)}, {vr(a[q],2)}, {vr(yf[q],2)}")
        for q in ks:
            e(f"v_pk_fma_f32 {vr(a[q],2)}, {vr(a[q],2)}, {vr(t[q],2)}, {vr(xf[q],2)}")
        for q in ks:
            e(f"v_cvt_pk_bf16_f32 v{O+q}, v{a[q]}, v{a[q]+1}")
    e(f"""buffer_store_dwordx4 {vr(O,4)}, v60, {srd(SRD_OUT)}, 0 offen
          buffer_store_dwordx4 {vr(O+4,4)}, v60, {srd(SRD_OUT)}, 0 offen offset:16
          buffer_store_dwordx2 {vr(O+8,2)}, v60, {srd(SRD_OUT)}, 0 offen offset:32""")


SP_ST = 0
SP_CSX = 130


def sp_stats_loads(k):
    e = k.e
    e(f"""s_lshl_b32 s6, s73, 6
          s_lshl_b32 s7, s{S_WAVE}, 4
          s_add_u32 s74, s6, s7
          v_and_b32 v2, 15, v1
          v_lshrrev_b32 v3, 4, v1
          v_add_u32 v4, s74, v2
          v_mul_u32_u24 v4, 1280, v4
          v_lshl_add_u32 v211, v3, 4, v4""")
    return [(f"buffer_load_dwordx4 {ar(SP_ST+4*t,4)}, v211, {srd(SRD_X)}, 0 offen offset:{64*t}{NT()}", f"st{t}") for t in range(20)]


def sp_stats(k, fills=()):
    e = k.e
    B = 214
    fills = list(fills)
    for i in range(4):
        e(f"v_mov_b32 v{B+i}, 0x3f803f80")
    for i in range(8):
        e(f"v_mov_b32 v{B+4+i}, 0")
    for t in range(20):
        k.vq.need(f"st{t}")
        e(f"v_mfma_f32_16x16x32_bf16 {vr(B+4,4)}, {ar(SP_ST+4*t,4)}, {ar(SP_ST+4*t,4)}, {vr(B+4,4)}")
        e(f"v_mfma_f32_16x16x32_bf16 {vr(B+8,4)}, {ar(SP_ST+4*t,4)}, {vr(B,4)}, {vr(B+8,4)}")
        if fills:
            emit_fill(k, fills.pop(0))
    while fills:
        emit_fill(k, fills.pop(0))
    a, b = B + 4, B + 8
    e(f"""v_and_b32 v5, 1, v1
          v_cmp_eq_u32 vcc, 1, v5
          v_and_b32 v5, 2, v1
          v_cmp_eq_u32 s[6:7], 2, v5
          s_nop 7
          v_cndmask_b32 v2, v{a}, v{a+1}, vcc
          v_cndmask_b32 v3, v{a+2}, v{a+3}, vcc
          v_cndmask_b32 v4, v{b}, v{b+1}, vcc
          v_cndmask_b32 v5, v{b+2}, v{b+3}, vcc
          v_cndmask_b32 v2, v2, v3, s[6:7]
          v_cndmask_b32 v3, v4, v5, s[6:7]
          v_mul_f32 v{B}, {1.0/640.0!r}, v3
          v_mul_f32 v2, {1.0/640.0!r}, v2
          v_fma_f32 v2, -v{B}, v{B}, v2
          v_max_f32 v2, 0, v2
          v_add_f32 v2, 0x3727c5ac, v2
          v_sqrt_f32 v{B+2}, v2
          s_nop 0
          v_rcp_f32 v{B+1}, v{B+2}
          v_mov_b32 v{B+3}, 0
          v_sub_f32 v3, 0, v{B}
          v_cvt_pk_bf16_f32 v4, v{B+2}, v3
          v_lshlrev_b32 v5, 16, v4
          v_and_b32 v6, 0xffff0000, v4
          v_sub_f32 v5, v{B+2}, v5
          v_sub_f32 v6, v3, v6
          v_cvt_pk_bf16_f32 v5, v5, v6
          s_mov_b32 s6, 0x05040100
          s_mov_b32 s7, 0x07060302
          v_perm_b32 v{B+4}, v5, v4, s6
          v_perm_b32 v{B+5}, v5, v4, s7
          v_mov_b32 v{B+6}, v{B+5}
          v_mov_b32 v{B+7}, 0
          v_lshrrev_b32 v3, 4, v1
          v_and_b32 v5, 3, v1
          v_lshl_add_u32 v5, v3, 2, v5
          v_add_u32 v5, s74, v5
          v_lshlrev_b32 v5, 4, v5
          s_mov_b32 s6, {WS_STAT16}
          s_mov_b32 s7, {WS_STATF}
          s_mov_b32 exec_lo, 0x00f0000f
          s_mov_b32 exec_hi, 0xf0000f00""")
    k.vm(f"""buffer_store_dwordx4 {vr(B+4,4)}, v5, {srd(SRD_WS)}, s6 offen sc1
          buffer_store_dwordx4 {vr(B,4)}, v5, {srd(SRD_WS)}, s7 offen sc1""", "stst")
    e("s_mov_b64 exec, -1")


def spare_path(k):
    e = k.e
    save = k.vq
    k.vq = Q(e, "vmcnt", 63)
    e(f"""s_lshl_b32 s73, s{S_XCD}, 2
          s_add_u32 s73, s73, s{S_SLOT}
          s_sub_u32 s73, s73, 28""")
    p0_loads(k)
    ids(k)
    poll_addrs(k)
    p0_compute(k, lambda: arrive(k), fills=sp_stats_loads(k))
    k.stamp("spare: p0 done")
    sp_stats(k)
    k.stamp("spare: stats done")
    k.vq.drain()
    e("s_barrier")
    k.set_flag(FL_KV)
    k.set_flag(FL_ST)
    k.stamp("spare: flags set")
    k.poll_block(V_PCNT, "cnt", dbg=True)
    e(f"""v_mov_b32 v60, {OOB}
          s_mov_b32 s100, 0
          s_mov_b32 s101, 0""")
    conv_h_setup(k)
    for lc in range(3):
        for it in conv_h_items(lc):
            emit_fill(k, it)
    k.poll_block(V_PA1, "fl1")
    e("s_barrier")
    g2_w2_setup(k)
    w2 = g2_w2_items()
    for g in w2[:N_W2_EARLY]:
        for it in g:
            emit_fill(k, it)
    k.poll_block(V_PA2, "fl2")
    e("s_barrier")
    for it in conv_x_items():
        emit_fill(k, it)
    conv_zero_tails(k)
    conv_xwrite(k)
    k.stamp("spare: ready")
    e("s_waitcnt vmcnt(0)")
    e("s_branch L_conv")
    k.vq = save


N_W2_EARLY = 24


def flat(groups):
    return [it for g in groups for it in g]


def build():
    k = K()
    e = k.e
    prologue(k)
    e(f"""s_cmp_ge_u32 s{S_SLOT}, 28
          s_cbranch_scc1 L_spare""")
    p0_loads(k)
    ids(k)
    g1_setup_dma(k)
    w2i = w2u_dma_items(k)
    g1_setup_rd(k)
    poll_addrs(k)
    if OPT["pf"]:
        pf_setup(k)
        for it in pf_x_items() + pf_items(list(range(OPT["pf0"]))):
            emit_fill(k, it)
    stores = p0_compute(k, lambda: arrive(k), fills=w2i + g1_dma(0) + g1_dma(1), w2u=True)
    for i in range(64):
        e(f"v_mov_b32 v{G1_ACC+i}, 0")
    g1_cs_init(k)
    e("s_waitcnt lgkmcnt(0)")
    k.stamp("p0 done")
    w2 = g2_w2_items()
    pre, post, fills = {}, {}, {}
    d2, d3 = g1_dma(2), g1_dma(3)
    fills[(0, -1)] = d2[0:6]
    fills[(0, 0)] = d2[6:12]
    fills[(0, 1)] = d3[0:6]
    fills[(0, 2)] = d3[6:12]
    for i, it in enumerate(stores):
        fills[(1 + i, 0)] = [it]
    if OPT["pf"]:
        for q in range(OPT["pf0"], 10):
            key = (q - OPT["pf0"], 2)
            fills[key] = fills.get(key, []) + pf_items([q])
    post[2] = lambda: k.poll_issue(V_PCNT, "cnt", dbg=True)

    pre[5] = lambda: k.poll_check(V_PCNT, "cnt", dbg=True)
    post[6] = lambda: k.poll_issue(V_PST, "pst")

    def pre8():
        k.vq.need("kvst")
        k.poll_check(V_PST, "pst")
    pre[8] = pre8

    def post8():
        k.set_flag(FL_KV)
        g1_epi_loads(k)
    post[8] = post8
    post[7] = lambda: conv_h_setup(k)
    fills[(8, 0)] = conv_h_items(0)
    fills[(8, 2)] = conv_h_items(1)
    fills[(9, 0)] = conv_h_items(2)

    def post9():
        g2_w2_setup(k)
        k.poll_issue(V_PA1, "fl1")
        k.poll_issue(V_PA2, "fl2", dst=V_POLL2)
    post[9] = post9
    g1_main(k, pre, post, fills)
    k.stamp("gemm1 done")
    hooks = {}
    wq = list(w2[:N_W2_EARLY])

    def w2some(n):
        def f():
            for _ in range(n):
                if wq:
                    for it in wq.pop(0):
                        emit_fill(k, it)
        return f
    for g in range(2, 8):
        hooks[g] = w2some(4)

    def h1():
        k.poll_check(V_PA1, "fl1")
        k.poll_check(V_PA2, "fl2", dst=V_POLL2)
        e("s_barrier")
        for it in conv_x_items():
            emit_fill(k, it)
    hooks[1] = h1

    def h6():
        conv_zero_tails(k)
        conv_xwrite(k)
        w2some(4)()
    hooks[6] = h6
    hpend = g1_epilogue(k, hooks)
    assert not wq
    k.vq.need("H")
    k.stamp("gelu done")
    e("L_conv:")
    conv_lane_setup(k)
    conv_unit_addr(k, 0)
    e("s_waitcnt lgkmcnt(0)\ns_barrier")
    conv_prime(k, 0)
    k.stamp("conv start")
    lq = Q(e, "lgkmcnt", 15)
    rest = w2[N_W2_EARLY:]
    nA = len(rest) // 2
    fillsA = {}
    for i, g in enumerate(rest[:nA]):
        fillsA.setdefault(1 + (i * 30) // nA, []).extend(g)
    for i, it in enumerate(hpend):
        fillsA.setdefault(3 + 6 * i, []).insert(0, it)

    def hflag():
        k.vq.need("hst")
        e("s_barrier")
        k.set_flag(FL_H)
    conv_steps(k, lq, 0, 32, {}, fillsA)
    two, halfb = e.lab("two"), e.lab("halfb")
    e(f"""s_cmp_eq_u32 s86, 0
          s_cbranch_scc1 {two}
          {halfb}:""")
    q_at_branch = list(k.vq.q)
    fillsB = {}
    for i, g in enumerate(rest[nA:]):
        fillsB.setdefault(32 + (i * 22) // (len(rest) - nA), []).extend(g)

    def hpoll():
        k.poll_issue(V_PA3, "fl3")

    def hcheck():
        k.poll_check(V_PA3, "fl3")
        g2_hsetup(k)
    for t in range(3):
        fillsB.setdefault(55 + 3 * t, []).extend(g2_hitems(t))
    conv_steps(k, lq, 32, 64, {36: hflag, 46: hpoll, 54: hcheck}, fillsB)
    conv_epilogue(k)
    e("L_gemm2:")
    q_join = list(k.vq.q)
    main_e = k.e
    sub = Emit(); sub.n = main_e.n + 1000
    k.e = sub; k.vq.e = sub
    save_q = k.vq.q
    k.vq.q = list(q_at_branch)
    sub(f"{two}:")
    conv_epilogue(k)
    sub(f"""s_cmp_eq_u32 s87, 3
           s_cselect_b32 s85, s85, s87
           s_cselect_b64 vcc, -1, 0
           v_mov_b32 v2, {OOB}
           v_cndmask_b32 v11, v11, v2, vcc""")
    conv_unit_addr(k, 32)
    conv_prime(k, 32)
    sub(f"s_branch {halfb}")
    out_of_line = sub.text()
    k.e = main_e; k.vq.e = main_e
    k.vq.q = q_join
    k.stamp("conv done")
    hooks = {}
    hooks[0] = lambda: g2_final_loads(k)

    def yflag():
        k.vq.need("yst")
        e("s_barrier")
        k.set_flag(FL_Y)
    hooks[3] = yflag
    hooks[6] = lambda: k.poll_issue(V_PA4, "fl4")

    def ycheck():
        k.poll_check(V_PA4, "fl4")
        g2_y2dma(k)
    hooks[9] = ycheck
    g2_main(k, hooks)
    k.stamp("gemm2 done")
    g2_reduce_final(k)
    k.stamp("end")
    if OPT["stamps"]:
        e(f"s_memrealtime s[44:45]\ns_waitcnt lgkmcnt(0)\nv_writelane_b32 v{V_STAMP}, s44, 63")
        sk = e.lab("nost")
        e(f"""s_cmp_lg_u32 s{S_WAVE}, 0
              s_cbranch_scc1 {sk}
              s_lshl_b32 s6, s2, 8
              s_add_u32 s6, s6, {WS_STAMP}
              v_lshlrev_b32 v2, 2, v1
              buffer_store_dword v{V_STAMP}, v2, {srd(SRD_WS)}, s6 offen
              {sk}:""")
    e("L_end:\ns_endpgm")
    e(out_of_line)
    e("L_spare:")
    k.vq.q = []
    spare_path(k)
    for t in k.tail:
        e(t)
    return k.e.text()


def main():
    out = sys.argv[1]
    for a in sys.argv[2:]:
        n, v = a.split("=")
        OPT[n] = int(v)
    body = build()
    label = NAME + "_kernel"
    txt = f"; @launch grid=(256,1,1) block=(256,1,1) lds=163840\n"
    txt += '.amdgcn_target "amdgcn-amd-amdhsa--gfx950"\n.text\n'
    txt += f".globl {label}\n.p2align 8\n.type {label},@function\n{label}:\n" + body
    txt += f""".section .rodata,"a"
.p2align 6
.amdhsa_kernel {label}
  .amdhsa_next_free_vgpr 512
  .amdhsa_next_free_sgpr 102
  .amdhsa_accum_offset 256
  .amdhsa_group_segment_fixed_size 0
  .amdhsa_kernarg_size 112
  .amdhsa_user_sgpr_count 2
  .amdhsa_user_sgpr_kernarg_segment_ptr 1
  .amdhsa_system_sgpr_workgroup_id_x 1
.end_amdhsa_kernel
"""
    open(out, "w").write(txt)
    open(out + ".stamps", "w").write(",".join(NAMES))


if __name__ == "__main__":
    main()
```

```python
import sys
from gen import (NAME, S, D, F, WS_FLAGS, WS_STAT16, WS_STATF, WS_CS16, WS_XR, WS_Y2, WS_W2F, WS_HF, WS_USED,
                 S_WG, S_XCD, S_SLOT, S_WAVE, SRD_X, SRD_K, SRD_V, SRD_W1, SRD_WS, SRD_OUT, SRD_T0, SRD_T1,
                 P_Q, P_K, P_V, P_SHK, P_SSMK, P_SSMD, P_BX, P_W1, P_B1, P_W2, P_B2, P_OUT, P_DBG, P_WS,
                 srd, vr, ar, Emit, mk_srd, mk_srd_off, GELU_K0, GELU_K1)

OPT = dict(stamps=0, spin=200000, p0sp=6, nt=0, pf=1, pf0=5)
WS_STAMP = 0x030000
SRD_DBG = 52
FL_KV, FL_ST, FL_CS, FL_W2, FL_H, FL_Y = 0, 4, 8, 12, 16, 20
V_L16, V_FLAG, V_ONE, V_POLL, V_STAMP = 248, 252, 253, 254, 255
V_POLL2, V_PST = 251, 231
V_PA1, V_PA2, V_PA3, V_PA4, V_PCNT = 228, 229, 249, 250, 230
S_SPIN = 42
OOB = 0x7fff0000

LDS_P0 = 131072
LDS_CV = 65536
SP_CS = 81920


NAMES = []
DBG_STAMPS = {"prologue": [(13, 0)], "p0v landed": [(12, 0)], "p0 done": [(3, 0), (10, 1)], "gemm1 done": [(4, 0), (11, 1)],
              "gelu done": [(5, 0)], "conv start": [(15, 0)], "conv done": [(6, 0)], "gemm2 done": [(7, 0)], "end": [(9, 0), (14, 1)]}


class Q:
    def __init__(self, e, name, cap):
        self.e, self.name, self.cap, self.q = e, name, cap, []

    def issue(self, tag, n=1):
        self.q += [tag] * n

    def need(self, *tags):
        idx = max((i for i, t in enumerate(self.q) if t in tags), default=-1)
        if idx < 0:
            return
        cnt = len(self.q) - 1 - idx
        assert cnt <= self.cap or self.name == "lgkmcnt", (self.name, cnt)
        self.e(f"s_waitcnt {self.name}({min(cnt, self.cap)})")
        if cnt <= self.cap:
            self.q = self.q[idx + 1:]
        else:
            self.q = self.q[len(self.q) - self.cap:]

    def drain(self):
        if self.q:
            self.e(f"s_waitcnt {self.name}(0)")
        self.q = []


class K:
    def __init__(self):
        self.e = Emit()
        self.vq = Q(self.e, "vmcnt", 63)
        self.tail = []
        self.nstamp = 0

    def stamp(self, name):
        if not OPT["stamps"]:
            return
        if OPT["stamps"] == 9:
            for lane, inv in DBG_STAMPS.get(name, ()):
                self.e(f"""s_memrealtime s[44:45]
                           s_waitcnt lgkmcnt(0)
                           {"s_not_b32 s44, s44" if inv else ""}
                           v_writelane_b32 v{V_STAMP}, s44, {lane}""")
            return
        self.e(f"""s_memtime s[44:45]
                   s_waitcnt lgkmcnt(0)
                   v_writelane_b32 v{V_STAMP}, s44, {self.nstamp}""")
        NAMES.append(name)
        self.nstamp += 1

    def vm(self, text, tag):
        for x in text.strip().split("\n"):
            x = x.strip()
            if not x:
                continue
            self.e(x)
            if x.startswith("buffer_"):
                self.vq.issue(tag)

    def set_flag(self, off):
        e = self.e
        sk = e.lab("fl")
        e(f"""s_cmp_lg_u32 s{S_WAVE}, 0
              s_cbranch_scc1 {sk}
              s_mov_b64 exec, 1
              buffer_store_dword v{V_ONE}, v{V_FLAG}, {srd(SRD_WS)}, 0 offen offset:{off} sc1
              s_mov_b64 exec, -1
              {sk}:""")

    def poll_issue(self, vaddr, tag, dbg=False, dst=V_POLL):
        self.vm(f"buffer_load_dword v{dst}, v{vaddr}, {srd(SRD_DBG if dbg else SRD_WS)}, 0 offen sc1", tag)

    def poll_check(self, vaddr, tag, dbg=False, dst=V_POLL):
        e = self.e
        slow, back = e.lab("slow"), e.lab("back")
        cmp = f"v_cmp_gt_u32 vcc, 32, v{dst}" if dbg else f"v_cmp_eq_u32 vcc, 0, v{dst}"
        self.vq.need(tag)
        if vaddr in (V_PA1, V_PA2, V_PCNT, V_PST):
            e(f"""s_cmp_lg_u32 s{S_WAVE}, 0
                  s_cbranch_scc1 {back}""")
        e(f"""{cmp}
              s_cbranch_vccnz {slow}
              {back}:""")
        self.tail.append(f"""{slow}:
              s_add_u32 s{S_SPIN}, s{S_SPIN}, 1
              s_cmp_gt_u32 s{S_SPIN}, {OPT['spin']}
              s_cbranch_scc1 {back}
              buffer_load_dword v{dst}, v{vaddr}, {srd(SRD_DBG if dbg else SRD_WS)}, 0 offen sc1
              s_waitcnt vmcnt(0)
              {cmp}
              s_cbranch_vccnz {slow}
              s_branch {back}""")

    def poll_block(self, vaddr, tag, dbg=False):
        self.poll_issue(vaddr, tag, dbg)
        self.poll_check(vaddr, tag, dbg)


def prologue(k):
    e = k.e
    e(f"""s_cmp_ge_u32 s2, 256
          s_cbranch_scc1 L_end
          {"s_memrealtime s[68:69]" if OPT["stamps"] else ""}
          s_load_dwordx16 s[40:55], s[0:1], 0
          s_load_dwordx8 s[56:63], s[0:1], 64
          s_load_dwordx4 s[64:67], s[0:1], 96
          s_and_b32 s{S_XCD}, s2, 7
          s_lshr_b32 s{S_SLOT}, s2, 3
          v_lshrrev_b32 v1, 6, v0
          v_and_b32 v0, 0xff, v0
          v_mov_b32 v{V_ONE}, 1
          v_readfirstlane_b32 s{S_WAVE}, v1
          v_and_b32 v1, 63, v0
          s_lshl_b32 s6, s2, 7
          v_mov_b32 v{V_FLAG}, s6
          v_lshlrev_b32 v{V_L16}, 4, v1
          v_and_b32 v{V_PCNT}, 7, v1
          v_lshlrev_b32 v{V_PCNT}, 5, v{V_PCNT}
          v_mov_b32 v{V_STAMP}, 0
          s_waitcnt lgkmcnt(0)""")
    mk_srd(e, SRD_WS, P_WS, WS_USED)
    sk = e.lab("clr")
    e(f"""s_cmp_lg_u32 s{S_WAVE}, 0
          s_cbranch_scc1 {sk}
          v_lshl_add_u32 v2, v1, 2, v{V_FLAG}
          v_mov_b32 v3, 0
          s_mov_b64 exec, 0xff
          buffer_store_dword v3, v2, {srd(SRD_WS)}, 0 offen sc1
          s_mov_b64 exec, -1
          {sk}:""")
    mk_srd(e, SRD_K, P_K, S * D * 2)
    mk_srd(e, SRD_V, P_V, S * D * 2)
    mk_srd(e, SRD_X, P_Q, S * D * 2)
    mk_srd(e, SRD_W1, P_W1, D * F * 2)
    mk_srd(e, SRD_OUT, P_OUT, S * D * 2)
    mk_srd(e, SRD_DBG, P_DBG, 256)
    e(f"s_mov_b32 s{S_SPIN}, 0")
    if OPT["stamps"] == 9:
        e(f"v_writelane_b32 v{V_STAMP}, s68, 2\ns_not_b32 s68, s68\nv_writelane_b32 v{V_STAMP}, s68, 1")
    elif OPT["stamps"]:
        e(f"s_memrealtime s[44:45]\ns_waitcnt lgkmcnt(0)\nv_writelane_b32 v{V_STAMP}, s44, 62\nv_writelane_b32 v{V_STAMP}, s68, 61")
    k.stamp("prologue")


def arrive(k):
    e = k.e
    sk = e.lab("arr")
    e(f"""s_cmp_lg_u32 s{S_WAVE}, 0
          s_cbranch_scc1 {sk}
          s_and_b32 s6, s2, 7
          s_lshl_b32 s6, s6, 5
          v_mov_b32 v2, s6
          s_mov_b64 exec, 1
          buffer_atomic_add v{V_ONE}, v2, {srd(SRD_DBG)}, 0 offen sc1
          s_mov_b64 exec, -1
          {sk}:""")


def ids(k):
    e = k.e
    e(f"""s_lshr_b32 s6, s{S_XCD}, 1
          s_lshl_b32 s6, s6, 2
          s_and_b32 s7, s{S_SLOT}, 3
          s_add_u32 s77, s6, s7
          s_and_b32 s6, s{S_XCD}, 1
          s_mul_i32 s6, s6, 7
          s_lshr_b32 s7, s{S_SLOT}, 2
          s_add_u32 s78, s6, s7
          s_and_b32 s82, s{S_WAVE}, 1
          s_lshr_b32 s83, s{S_WAVE}, 1
          s_lshl_b32 s6, s{S_XCD}, 4
          s_lshr_b32 s7, s{S_SLOT}, 1
          s_add_u32 s6, s6, s7
          s_mul_i32 s6, s6, 5
          s_and_b32 s89, s{S_SLOT}, 1
          s_lshl_b32 s7, s89, 1
          s_add_u32 s88, s6, s7
          s_lshr_b32 s6, s{S_XCD}, 1
          s_lshl_b32 s6, s6, 3
          s_and_b32 s7, s{S_SLOT}, 7
          s_add_u32 s94, s6, s7
          s_and_b32 s6, s{S_XCD}, 1
          s_lshl_b32 s6, s6, 2
          s_lshr_b32 s7, s{S_SLOT}, 3
          s_add_u32 s95, s6, s7
          s_mul_i32 s96, s{S_WAVE}, 14
          s_cmp_eq_u32 s{S_WAVE}, 3
          s_cselect_b32 s6, 1, 0
          s_sub_u32 s96, s96, s6""")


def poll_addrs(k):
    e = k.e
    e(f"""v_min_u32 v2, 53, v1
          v_lshlrev_b32 v2, 2, v2
          s_lshr_b32 s43, s95, 1
          v_add_u32 v2, s43, v2
          v_lshlrev_b32 v2, 7, v2
          v_add_u32 v{V_PA1}, {FL_KV}, v2
          s_lshl_b32 s6, s77, 1
          v_and_b32 v4, 1, v1
          v_add_u32 v4, s6, v4
          v_and_b32 v5, 3, v4
          v_add_u32 v5, 28, v5
          v_lshrrev_b32 v4, 2, v4
          v_lshl_add_u32 v4, v5, 3, v4
          v_lshlrev_b32 v4, 7, v4
          v_add_u32 v{V_PST}, {FL_ST}, v4
          v_and_b32 v2, 31, v1
          v_and_b32 v3, 7, v2
          v_lshrrev_b32 v2, 3, v2
          v_lshlrev_b32 v2, 3, v2
          v_add_u32 v2, s{S_XCD}, v2
          v_lshl_add_u32 v2, v2, 3, v3
          v_lshlrev_b32 v{V_PA2}, 7, v2
          v_cmp_gt_u32 vcc, 14, v1
          v_cndmask_b32 v2, 0, v1, vcc
          v_cmp_lt_u32 vcc, 6, v2
          v_cndmask_b32 v3, 0, 1, vcc
          v_mul_u32_u24 v4, 7, v3
          v_sub_u32 v2, v2, v4
          s_lshr_b32 s6, s94, 1
          s_and_b32 s7, s6, 3
          s_lshr_b32 s6, s6, 2
          s_lshl_b32 s6, s6, 1
          v_lshlrev_b32 v2, 2, v2
          v_add_u32 v2, s7, v2
          v_add_u32 v3, s6, v3
          v_lshl_add_u32 v2, v2, 3, v3
          v_lshlrev_b32 v2, 7, v2
          v_add_u32 v{V_PA3}, {FL_H}, v2
          v_and_b32 v2, 31, v1
          v_lshlrev_b32 v2, 3, v2
          v_add_u32 v2, s95, v2
          v_lshlrev_b32 v2, 7, v2
          v_add_u32 v{V_PA4}, {FL_Y}, v2
          v_mov_b32 v2, {OOB}
          s_cmp_lg_u32 s{S_WAVE}, 0
          s_cselect_b64 vcc, -1, 0
          v_cndmask_b32 v{V_PA1}, v{V_PA1}, v2, vcc
          v_cndmask_b32 v{V_PA2}, v{V_PA2}, v2, vcc
          v_cndmask_b32 v{V_PST}, v{V_PST}, v2, vcc
          v_cndmask_b32 v{V_PCNT}, v{V_PCNT}, v2, vcc""")


P0_K, P0_V, P0_SK, P0_T, P0_KF, P0_VF, P0_R = 8, 36, 52, 68, 100, 114, 122
P0_SA = 172


def NT(kind):
    bit = dict(kv=1, w2=2, h=4, st=8, pfx=16, pfw=32, g=64)[kind]
    return " nt" if OPT["nt"] & bit else ""


def p0_loads(k, deferred=False):
    e = k.e
    A4, A5, A6 = (226, 227, 213) if deferred else (4, 5, 6)
    mk_srd(e, SRD_T0, P_SHK, D * 4 * 2)
    e(f"""s_lshr_b32 s6, s{S_SLOT}, 3
          s_lshl_b32 s7, s{S_XCD}, 2
          s_add_u32 s68, s6, s7
          s_and_b32 s69, s{S_SLOT}, 7
          v_mul_u32_u24 v2, 26, v1
          v_lshrrev_b32 v2, 8, v2
          v_mul_u32_u24 v3, 10, v2
          v_sub_u32 v3, v1, v3
          s_lshl_b32 s6, s68, 6
          s_lshl_b32 s7, s{S_WAVE}, 4
          s_add_u32 s6, s6, s7
          s_mul_i32 s6, s6, 1280
          s_mul_i32 s7, s69, 160
          s_add_u32 s6, s6, s7
          v_mul_u32_u24 v4, 5120, v2
          v_lshl_add_u32 v4, v3, 4, v4
          v_add_u32 v{A4}, s6, v4
          v_subrev_u32 v{A5}, 3840, v{A4}
          s_mul_i32 s7, s69, 640
          v_lshlrev_b32 v6, 6, v3
          v_add_u32 v{A6}, s7, v6""")
    items = []
    for r in range(3):
        items.append((f"buffer_load_dwordx4 {vr(P0_K+4*r,4)}, v{A5}, {srd(SRD_K)}, 0 offen offset:{1280*r}{NT('kv')}", "p0k"))
    for r in range(4):
        items.append((f"buffer_load_dwordx4 {vr(P0_K+12+4*r,4)}, v{A4}, {srd(SRD_K)}, 0 offen offset:{1280*r}{NT('kv')}", "p0k"))
    for r in range(4):
        items.append((f"buffer_load_dwordx4 {vr(P0_SK+4*r,4)}, v{A6}, {srd(SRD_T0)}, 0 offen offset:{16*r}", "p0s"))
    for r in range(4):
        items.append((f"buffer_load_dwordx4 {vr(P0_V+4*r,4)}, v{A4}, {srd(SRD_V)}, 0 offen offset:{1280*r}{NT('kv')}", "p0v"))
    tailtxt = f"""s_lshl_b32 s7, s{S_WAVE}, 5
          s_sub_u32 s7, {LDS_P0 + 120}, s7
          v_mul_u32_u24 v7, 1152, v3
          v_lshlrev_b32 v2, 3, v2
          v_sub_u32 v7, v7, v2
          v_add_u32 v7, s7, v7"""
    if deferred:
        e(tailtxt)
        e(f"""v_mov_b32 v2, {OOB}
              v_cmp_lt_u32 vcc, 39, v1
              v_cndmask_b32 v{A4}, v{A4}, v2, vcc
              v_cndmask_b32 v{A5}, v{A5}, v2, vcc
              v_cndmask_b32 v{A6}, v{A6}, v2, vcc""")
        return items
    e("s_mov_b32 exec_hi, 0xff")
    for it in items:
        emit_fill(k, it)
    e(tailtxt)
    e("s_mov_b64 exec, -1")


LDS_W2U = LDS_P0 + 11520


def w2u_dma_items(k):
    e = k.e
    mk_srd(e, SRD_T1, P_W2, F * D * 2)
    e(f"""s_lshr_b32 s6, s2, 2
          s_lshl_b32 s6, s6, 5
          s_lshl_b32 s7, s{S_WAVE}, 3
          s_add_u32 s6, s6, s7
          s_mul_i32 s6, s6, 1280
          s_and_b32 s7, s2, 3
          s_mul_i32 s7, s7, 320
          s_add_u32 s6, s6, s7
          s_cmp_lt_u32 s2, 216
          s_cselect_b32 s6, s6, {OOB}""")
    for i in range(3):
        e(f"""v_add_u32 v2, {64*i}, v1
              v_mul_u32_u24 v3, 205, v2
              v_lshrrev_b32 v3, 12, v3
              v_mul_u32_u24 v4, 20, v3
              v_sub_u32 v2, v2, v4
              v_mul_u32_u24 v3, 1280, v3
              v_lshl_add_u32 v2, v2, 4, v3
              v_add_u32 v2, s6, v2
              v_subrev_u32 v{204+i}, {1024*i}, v2""")
    e(f"""s_mul_i32 s6, s{S_WAVE}, 2560
          s_add_u32 s74, s6, {LDS_W2U}""")
    return [("s_mov_b32 m0, s74", None), ("s_nop 0", None),
            (f"buffer_load_dwordx4 v204, {srd(SRD_T1)}, 0 offen{NT('w2')} lds", "w2u"),
            (f"buffer_load_dwordx4 v205, {srd(SRD_T1)}, 0 offen offset:1024{NT('w2')} lds", "w2u"),
            (f"s_mov_b32 exec_hi, 0\nbuffer_load_dwordx4 v206, {srd(SRD_T1)}, 0 offen offset:2048{NT('w2')} lds\ns_mov_b64 exec, -1", "w2u")]


def w2u_setup(k):
    k.e(f"""v_lshrrev_b32 v2, 4, v1
          v_bfe_u32 v3, v1, 2, 2
          v_lshrrev_b32 v4, 1, v2
          v_lshlrev_b32 v4, 4, v4
          v_and_b32 v2, 1, v2
          v_lshl_add_u32 v2, v2, 2, v3
          v_add_u32 v2, v2, v4
          v_mul_u32_u24 v2, 320, v2
          v_and_b32 v3, 3, v1
          v_mul_u32_u24 v3, 40, v3
          v_add_u32 v2, v2, v3
          v_add_u32 v204, {LDS_W2U}, v2
          s_and_b32 s6, s2, 3
          s_lshl_b32 s6, s6, 1
          s_mul_i32 s6, s6, 54
          s_lshr_b32 s7, s2, 2
          s_add_u32 s6, s6, s7
          s_mul_i32 s74, s6, 5120
          s_add_u32 s74, s74, {WS_W2F}
          v_mov_b32 v205, {OOB}
          s_cmp_lt_u32 s2, 216
          s_cselect_b64 vcc, -1, 0
          v_cndmask_b32 v205, v205, v{V_L16}, vcc""")


W2U_S = (75, 76, 93)


def w2u_block(k, m, dst):
    so = W2U_S[m]
    k.e(f"""s_add_u32 s6, s{S_WAVE}, {4*m}
          s_cmp_ge_u32 s6, 5
          s_cselect_b32 s7, 5, 0
          s_cselect_b32 s43, {54*5120}, 0
          s_cselect_b32 s{so}, 160, 0
          s_sub_u32 s6, s6, s7
          s_lshl_b32 s7, s6, 3
          s_add_u32 s{so}, s{so}, s7
          v_add_u32 v2, s{so}, v204
          s_lshl_b32 s6, s6, 10
          s_add_u32 s6, s6, s43
          s_add_u32 s{so}, s6, s74
          ds_read_b64_tr_b16 v[{dst}:{dst+1}], v2
          ds_read_b64_tr_b16 v[{dst+2}:{dst+3}], v2 offset:2560""")


def p0_compute(k, first_wait_hook=None, fills=(), w2u=False):
    e = k.e
    K_, V_, SK, T, KF, VF, R = P0_K, P0_V, P0_SK, P0_T, P0_KF, P0_VF, P0_R
    fills = list(fills)
    k.stamp("p0 before wait")
    k.vq.need("p0s")
    k.stamp("p0s landed")
    if first_wait_hook:
        first_wait_hook()
    n = 0
    for j in range(4):
        for tap in range(4):
            for h in range(2):
                src = SK + 4 * j + 2 * h + (tap >> 1)
                dst = T + (tap * 4 + j) * 2 + h
                if tap & 1:
                    e(f"v_and_b32 v{dst}, 0xffff0000, v{src}")
                else:
                    e(f"v_lshlrev_b32 v{dst}, 16, v{src}")
                n += 1
                if n % OPT["p0sp"] == 0:
                    pop_vmem(k, fills)
    k.vq.need("p0v")
    k.stamp("p0v landed")
    cnt = [0]

    def c(x):
        e(x)
        cnt[0] += 1
        if cnt[0] % OPT["p0sp"] == 0:
            pop_vmem(k, fills)
    for j in range(4):
        for r in range(7):
            c(f"v_lshlrev_b32 v{KF+2*r}, 16, v{K_+4*r+j}")
            c(f"v_and_b32 v{KF+2*r+1}, 0xffff0000, v{K_+4*r+j}")
        for r in range(4):
            c(f"v_lshlrev_b32 v{VF+2*r}, 16, v{V_+4*r+j}")
            c(f"v_and_b32 v{VF+2*r+1}, 0xffff0000, v{V_+4*r+j}")
        for i in range(4):
            c(f"v_pk_mul_f32 {vr(R+2*i,2)}, {vr(KF+2*(i+3),2)}, {vr(T+(0*4+j)*2,2)}")
        for tap in range(1, 4):
            for i in range(4):
                c(f"v_pk_fma_f32 {vr(R+2*i,2)}, {vr(KF+2*(i+3-tap),2)}, {vr(T+(tap*4+j)*2,2)}, {vr(R+2*i,2)}")
        for i in range(4):
            c(f"v_pk_mul_f32 {vr(R+2*i,2)}, {vr(R+2*i,2)}, {vr(VF+2*i,2)}")
        e("s_mov_b32 exec_hi, 0xff")
        for h in range(2):
            e(f"v_cvt_pk_bf16_f32 v{KF+2*h}, v{R+6+h}, v{R+4+h}")
            e(f"v_cvt_pk_bf16_f32 v{KF+2*h+1}, v{R+2+h}, v{R+h}")
            e(f"ds_write_b64 v7, {vr(KF+2*h,2)} offset:{(2*j+h)*144}")
        e("s_mov_b64 exec, -1")
    while fills:
        emit_fill(k, fills.pop(0))
    if w2u:
        w2u_setup(k)
    e(f"""v_lshrrev_b32 v2, 3, v1
          s_mul_i32 s6, s{S_WAVE}, 20
          v_add_u32 v2, s6, v2
          v_and_b32 v3, 7, v1
          v_lshlrev_b32 v3, 4, v3
          v_mul_u32_u24 v4, 144, v2
          v_add_u32 v4, v4, v3
          v_add_u32 v4, {LDS_P0}, v4
          v_lshl_add_u32 v5, v2, 12, v3
          s_mul_i32 s6, s69, {80*4096}
          s_lshl_b32 s7, s68, 7
          s_sub_u32 s6, s6, s7
          s_add_u32 s70, s6, {WS_XR + 1984*2}
          s_add_u32 s71, s70, {8*4096}
          s_add_u32 s72, s70, {16*4096}""")
    if w2u:
        k.vq.need("w2u")
    e("s_waitcnt lgkmcnt(0)")
    k.stamp("p0 compute done")
    e(f"""s_barrier
          ds_read_b128 v[8:11], v4
          ds_read_b128 v[12:15], v4 offset:1152
          ds_read_b128 v[16:19], v4 offset:2304""")
    if w2u:
        w2u_block(k, 0, 20)
        w2u_block(k, 1, 24)
        w2u_block(k, 2, 28)
        e(f"""v_mov_b32 v{P0_SA}, v5
              s_cmp_ge_u32 s{S_WAVE}, 2
              s_cselect_b64 vcc, -1, 0
              v_mov_b32 v3, {OOB}
              v_cndmask_b32 v{P0_SA+1}, v205, v3, vcc""")
        return [(f"buffer_store_dwordx4 v[8:11], v{P0_SA}, {srd(SRD_WS)}, s70 offen sc1", "kvst"),
                (f"buffer_store_dwordx4 v[12:15], v{P0_SA}, {srd(SRD_WS)}, s71 offen sc1", "kvst"),
                (f"s_mov_b32 exec_hi, 0\nbuffer_store_dwordx4 v[16:19], v{P0_SA}, {srd(SRD_WS)}, s72 offen sc1\ns_mov_b64 exec, -1", "kvst"),
                (f"buffer_store_dwordx4 v[20:23], v205, {srd(SRD_WS)}, s{W2U_S[0]} offen sc1", "kvst"),
                (f"buffer_store_dwordx4 v[24:27], v205, {srd(SRD_WS)}, s{W2U_S[1]} offen sc1", "kvst"),
                (f"buffer_store_dwordx4 v[28:31], v{P0_SA+1}, {srd(SRD_WS)}, s{W2U_S[2]} offen sc1", "kvst")]
    e("s_waitcnt lgkmcnt(2)")
    k.vm(f"buffer_store_dwordx4 v[8:11], v5, {srd(SRD_WS)}, s70 offen sc1", "kvst")
    e("s_waitcnt lgkmcnt(1)")
    k.vm(f"buffer_store_dwordx4 v[12:15], v5, {srd(SRD_WS)}, s71 offen sc1", "kvst")
    e("s_waitcnt lgkmcnt(0)\ns_mov_b32 exec_hi, 0")
    k.vm(f"buffer_store_dwordx4 v[16:19], v5, {srd(SRD_WS)}, s72 offen sc1", "kvst")
    e("s_mov_b64 exec, -1")


G1_VW, G1_VX, G1_VA, G1_VB = 208, 212, 216, 220
G1_ACC, G1_P, G1_Qs = 64, 128, 144
G1_SEL, G1_CS = 160, 164


def g1_setup_dma(k):
    e = k.e
    e(f"""s_lshl_b32 s79, s78, 8
          s_mul_i32 s80, s77, {128*1280}
          s_lshl_b32 s81, s{S_WAVE}, 12
          v_lshrrev_b32 v2, 4, v1
          v_and_b32 v3, 15, v1
          v_lshlrev_b32 v4, 2, v2
          v_xor_b32 v4, v3, v4
          s_lshl_b32 s6, s{S_WAVE}, 4
          v_add_u32 v5, s6, v2
          v_mul_u32_u24 v5, 3456, v5
          v_lshl_add_u32 v{G1_VW}, v4, 4, v5
          s_cmp_eq_u32 s78, 13
          s_cselect_b32 s7, 8, 16
          v_cmp_le_u32 vcc, s7, v4
          v_mov_b32 v6, {OOB}
          v_cndmask_b32 v{G1_VW}, v{G1_VW}, v6, vcc""")
    for j in range(1, 4):
        e(f"v_add_u32 v{G1_VW+j}, {j*(4*3456-1024)}, v{G1_VW}")
    e(f"""v_lshrrev_b32 v4, 3, v1
          v_and_b32 v5, 7, v1
          s_lshl_b32 s6, s{S_WAVE}, 5
          v_add_u32 v4, s6, v4
          v_mul_u32_u24 v4, 1280, v4""")
    for j in range(4):
        e(f"""v_add_u32 v6, {4*(j&1)}, v2
              v_xor_b32 v6, v5, v6
              v_lshl_add_u32 v6, v6, 4, v4
              v_add_u32 v{G1_VX+j}, {j*(8*1280-1024)}, v6""")


def g1_setup_rd(k):
    e = k.e
    e(f"""v_lshrrev_b32 v2, 4, v1
          v_bfe_u32 v4, v1, 2, 2
          v_and_b32 v5, 3, v1
          v_lshrrev_b32 v6, 5, v1
          v_lshl_add_u32 v6, v6, 3, v4
          v_lshlrev_b32 v6, 8, v6
          s_lshl_b32 s6, s82, 1
          v_xor_b32 v4, s6, v4
          v_lshlrev_b32 v4, 2, v4
          v_and_b32 v3, 1, v2
          v_lshl_or_b32 v4, v3, 1, v4
          v_lshrrev_b32 v3, 1, v5
          v_or_b32 v4, v4, v3
          v_lshl_add_u32 v6, v4, 4, v6
          v_and_b32 v5, 1, v5
          v_lshl_add_u32 v{G1_VA}, v5, 3, v6
          v_xor_b32 v{G1_VA+1}, 64, v{G1_VA}
          v_add_u32 v{G1_VA+2}, 0x10000, v{G1_VA}
          v_add_u32 v{G1_VA+3}, 0x10000, v{G1_VA+1}
          v_and_b32 v4, 31, v1
          v_bfe_u32 v5, v1, 1, 3
          v_lshrrev_b32 v6, 5, v1
          v_xor_b32 v5, v5, v6
          s_lshl_b32 s6, s83, 6
          v_add_u32 v4, s6, v4
          v_lshlrev_b32 v4, 7, v4
          v_lshl_add_u32 v{G1_VB}, v5, 4, v4""")
    for ks in range(1, 4):
        e(f"v_xor_b32 v{G1_VB+ks}, {32*ks}, v{G1_VB}")
    for ks in range(4):
        e(f"v_add_u32 v{G1_VB+4+ks}, 0x10000, v{G1_VB+ks}")


PF_W, PF_X, PF_D = 232, 233, 234


def pf_setup(k):
    k.e(f"""s_lshl_b32 s6, s{S_SLOT}, 2
          s_add_u32 s6, s6, s{S_WAVE}
          s_lshl_b32 s7, s6, 3
          v_and_b32 v2, 7, v1
          v_add_u32 v2, s7, v2
          v_lshrrev_b32 v3, 3, v1
          v_mul_u32_u24 v4, 4682, v2
          v_lshrrev_b32 v4, 16, v4
          v_mul_u32_u24 v5, 14, v4
          v_sub_u32 v5, v2, v5
          v_lshl_add_u32 v4, v3, 6, v4
          v_mul_u32_u24 v4, 3456, v4
          v_lshl_add_u32 v4, v5, 7, v4
          s_and_b32 s7, s{S_XCD}, 1
          s_mul_i32 s43, s7, 1792
          v_add_u32 v4, s43, v4
          s_sub_u32 s7, 13, s7
          v_mov_b32 v6, {OOB}
          v_cmp_lt_u32 vcc, s7, v5
          v_cndmask_b32 v{PF_W}, v4, v6, vcc
          s_lshr_b32 s7, s{S_XCD}, 1
          s_mul_i32 s7, s7, {512*1280}
          s_mul_i32 s6, s6, {46*128}
          s_add_u32 s7, s7, s6
          v_lshlrev_b32 v2, 7, v1
          v_add_u32 v2, s7, v2
          v_cmp_gt_u32 vcc, 46, v1
          v_cndmask_b32 v{PF_X}, v6, v2, vcc
          s_mov_b32 s41, {8*64*3456}""")


def pf_x_items():
    nt = NT("pfx")
    return [(f"buffer_load_dword v{PF_D+1}, v{PF_X}, {srd(SRD_X)}, 0 offen{nt}", "pf")]


def pf_items(slabs):
    hi = slabs[0] >= 8
    mask = 0
    for q in slabs:
        mask |= 0xff << (8 * (q & 7))
    pre = [f"s_mov_b32 exec_lo, 0x{mask & 0xffffffff:x}", f"s_mov_b32 exec_hi, 0x{mask >> 32:x}"]
    so = "s41" if hi else "0"
    nt = NT("pfw")
    a = f"buffer_load_dword v{PF_D}, v{PF_W}, {srd(SRD_W1)}, {so} offen{nt}"
    return [("\n".join(pre + [a, "s_mov_b64 exec, -1"]), "pf")]


def g1_dma(slab):
    slot = slab % 4
    tag = f"s{slab}"
    out = [(f"s_add_u32 m0, s81, {slot*32768}", None)]
    out.append((f"s_add_u32 s79, s79, {64*3456}" if slab else "s_nop 0", None))
    for j in range(4):
        out.append((f"buffer_load_dwordx4 v{G1_VW+j}, {srd(SRD_W1)}, s79 offen offset:{1024*j}{NT('g')} lds", tag))
    out.append((f"s_add_u32 m0, s81, {slot*32768+16384}", None))
    out.append(("s_add_u32 s80, s80, 128" if slab else "s_nop 0", None))
    for j in range(4):
        out.append((f"buffer_load_dwordx4 v{G1_VX+j}, {srd(SRD_X)}, s80 offen offset:{1024*j}{NT('g')} lds", tag))
    return out


def g1_reads(slab, ks, fs):
    slot = slab % 4
    hi = slot >= 2
    so = (slot & 1) * 32768
    va = G1_VA + (2 if hi else 0)
    vb = G1_VB + (4 if hi else 0) + ks
    return [("A0", f"ds_read_b64_tr_b16 {vr(fs,2)}, v{va} offset:{so+ks*4096}"),
            ("A0", f"ds_read_b64_tr_b16 {vr(fs+2,2)}, v{va} offset:{so+ks*4096+1024}"),
            ("B0", f"ds_read_b128 {vr(fs+8,4)}, v{vb} offset:{so+16384}"),
            ("B1", f"ds_read_b128 {vr(fs+12,4)}, v{vb} offset:{so+16384+4096}"),
            ("A1", f"ds_read_b64_tr_b16 {vr(fs+4,2)}, v{va+1} offset:{so+ks*4096}"),
            ("A1", f"ds_read_b64_tr_b16 {vr(fs+6,2)}, v{va+1} offset:{so+ks*4096+1024}")]


def emit_fill(k, item):
    x, tag = item
    k.e(x)
    if isinstance(tag, tuple):
        for t in tag:
            k.vq.issue(t)
    elif tag is not None:
        k.vq.issue(tag)


def pop_vmem(k, fills):
    while fills:
        it = fills.pop(0)
        emit_fill(k, it)
        if it[1] is not None:
            break
    while fills and fills[0][1] is None and "exec, -1" in fills[0][0]:
        emit_fill(k, fills.pop(0))


def g1_main(k, pre, post, fills):
    e = k.e
    lq = Q(e, "lgkmcnt", 15)
    sets = [G1_P, G1_Qs]
    steps = [(sl, ks) for sl in range(10) for ks in range(4)]

    def group(cur, nxt, fill):
        rd = []
        if nxt is not None:
            n = steps.index(nxt)
            rd = [(f"{t}_{n}", x) for t, x in g1_reads(nxt[0], nxt[1], sets[n & 1])]
        fill = list(fill)
        if cur is None:
            for t, x in rd:
                e(x); lq.issue(t)
            for x in fill:
                emit_fill(k, x)
            return
        c = steps.index(cur)
        fs = sets[c & 1]
        order = [(0, 0, ("A0", "B0")), (0, 1, ("B1",)), (1, 0, ("A1",)), (1, 1, ())]
        per_r = [2, 2, 2, 0]
        nf = len(fill)
        per_f = [(nf * (m + 1)) // 4 - (nf * m) // 4 for m in range(4)]
        for m, (ft, st, nd) in enumerate(order):
            if nd:
                lq.need(*[f"{t}_{c}" for t in nd])
            acc = G1_ACC + (ft * 2 + st) * 16
            e(f"v_mfma_f32_32x32x16_bf16 {vr(acc,16)}, {vr(fs+4*ft,4)}, {vr(fs+8+4*st,4)}, {vr(acc,16)}")
            if st == 1:
                e(f"v_mfma_f32_16x16x32_bf16 {vr(G1_CS+4*ft,4)}, {vr(G1_SEL,4)}, {vr(fs+4*ft,4)}, {vr(G1_CS+4*ft,4)}")
            for _ in range(per_r[m]):
                if rd:
                    t, x = rd.pop(0); e(x); lq.issue(t)
            for _ in range(per_f[m]):
                emit_fill(k, fill.pop(0))

    for sl in range(10):
        lq.drain()
        if OPT["stamps"] == 3:
            k.stamp(f"g1 it{sl} top")
        k.vq.need(f"s{sl}")
        if OPT["stamps"] == 3:
            k.stamp(f"g1 it{sl} landed")
        if sl in pre:
            pre[sl]()
        e("s_barrier")
        if OPT["stamps"] in (2, 3):
            k.stamp(f"g1 it{sl}")
        if sl in post:
            post[sl]()
        dma = g1_dma(sl + 3) if 3 < sl + 3 < 10 else []
        parts = [dma[0:4], dma[4:6], dma[6:10], dma[10:12]] if dma else [[], [], [], []]
        group((sl - 1, 3) if sl else None, (sl, 0), parts[0] + fills.get((sl, -1), []))
        for ks in range(3):
            group((sl, ks), (sl, ks + 1), parts[ks + 1] + fills.get((sl, ks), []))
    group((9, 3), None, fills.get((9, 3), []))


def g1_cs_init(k):
    k.e(f"""v_and_b32 v2, 15, v1
          v_bfe_u32 v3, v1, 4, 1
          v_lshlrev_b32 v3, 2, v3
          v_cmp_eq_u32 vcc, v2, v3
          v_mov_b32 v2, 0x3f803f80
          v_cndmask_b32 v{G1_SEL}, 0, v2, vcc""")
    for i in range(1, 4):
        k.e(f"v_mov_b32 v{G1_SEL+i}, v{G1_SEL}")
    for i in range(8):
        k.e(f"v_mov_b32 v{G1_CS+i}, 0")


def g1_epi_loads(k):
    e = k.e
    mk_srd(e, SRD_T1, P_B1, F * 2)
    e(f"""v_and_b32 v2, 31, v1
          s_lshl_b32 s6, s78, 7
          s_lshl_b32 s7, s82, 6
          s_add_u32 s6, s6, s7
          v_add_u32 v3, s6, v2
          v_lshlrev_b32 v3, 1, v3
          s_cmp_ge_u32 s6, {F}
          s_cselect_b32 s101, 0, 32
          s_lshl_b32 s6, s77, 7
          s_lshl_b32 s7, s83, 6
          s_add_u32 s6, s6, s7
          v_add_u32 v4, s6, v2
          v_lshlrev_b32 v4, 4, v4
          v_mov_b32 v5, {OOB}
          v_cmp_gt_u32 vcc, 32, v1
          v_cndmask_b32 v3, v5, v3, vcc
          v_cndmask_b32 v5, v5, v4, vcc
          s_mov_b32 s7, {WS_STAT16}
          s_mov_b32 s84, {WS_STATF}""")
    k.vm(f"""buffer_load_ushort v28, v3, {srd(SRD_T1)}, 0 offen
          buffer_load_ushort v32, v3, {srd(SRD_T1)}, 0 offen offset:64
          buffer_load_dwordx4 v[36:39], v5, {srd(SRD_WS)}, s7 offen
          buffer_load_dwordx4 v[40:43], v5, {srd(SRD_WS)}, s7 offen offset:512
          buffer_load_dwordx4 v[44:47], v4, {srd(SRD_WS)}, s84 offen
          buffer_load_dwordx4 v[48:51], v4, {srd(SRD_WS)}, s84 offen offset:512""", "epi")


def g1_epilogue(k, hooks):
    e = k.e
    k.vq.need("epi")
    e("s_nop 7")
    for ft in range(2):
        a, c = 28 + 4 * ft, G1_CS + 4 * ft
        e(f"""v_lshl_or_b32 v{a}, v{a}, 16, v{a}
              v_cvt_pk_bf16_f32 v{a+1}, v{c}, v{c}
              v_lshlrev_b32 v2, 16, v{a+1}
              v_sub_f32 v2, v{c}, v2
              v_cvt_pk_bf16_f32 v{a+2}, v2, v2
              v_mov_b32 v{a+3}, 0""")
    e("s_nop 1")
    for ft in range(2):
        for st in range(2):
            acc = G1_ACC + (ft * 2 + st) * 16
            e(f"v_mfma_f32_32x32x16_bf16 {vr(acc,16)}, {vr(28+4*ft,4)}, {vr(36+4*st,4)}, {vr(acc,16)}")
    for st in range(2):
        r, sg = 45 + 4 * st, 46 + 4 * st
        e(f"""v_mul_f32 v{52+4*st}, {GELU_K0!r}, v{r}
              v_mul_f32 v2, v{r}, v{r}
              v_mul_f32 v2, v2, v{r}
              v_mul_f32 v{53+4*st}, {GELU_K1!r}, v2
              v_mov_b32 v{54+4*st}, v{sg}
              v_mov_b32 v{55+4*st}, v{sg}""")
    e(f"""v_and_b32 v2, 15, v1
          v_lshrrev_b32 v3, 3, v2
          v_lshlrev_b32 v3, 3, v3
          v_and_b32 v4, 1, v2
          v_lshl_or_b32 v3, v4, 2, v3
          v_bfe_u32 v4, v2, 1, 2
          v_or_b32 v3, v3, v4
          v_lshlrev_b32 v3, 4, v3
          v_bfe_u32 v4, v1, 4, 1
          v_lshl_or_b32 v3, v4, 10, v3
          v_lshrrev_b32 v4, 5, v1
          v_lshl_or_b32 v3, v4, 8, v3
          v_mov_b32 v4, {OOB}
          s_cmp_eq_u32 s101, 0
          s_cselect_b64 vcc, -1, 0
          v_cndmask_b32 v60, v3, v4, vcc
          s_lshl_b32 s6, s77, 1
          s_add_u32 s6, s6, s83
          s_mul_i32 s6, s6, 54
          s_lshl_b32 s7, s78, 2
          s_add_u32 s6, s6, s7
          s_lshl_b32 s7, s82, 1
          s_add_u32 s6, s6, s7
          s_lshl_b32 s6, s6, 12
          s_add_u32 s100, s6, {WS_HF}
          s_add_u32 s101, s100, 4096""")
    T = 160
    g = 0
    pend = []
    for ft in range(2):
        for st in range(2):
            acc = G1_ACC + (ft * 2 + st) * 16
            KK, SS = vr(52 + 4 * st, 2), vr(54 + 4 * st, 2)
            for u in range(2):
                if g in hooks:
                    hooks[g]()
                z = [acc + 8 * u + 2 * p for p in range(4)]
                t = [T + 2 * p for p in range(4)]
                for p in range(4):
                    e(f"v_pk_mul_f32 {vr(t[p],2)}, {vr(z[p],2)}, {vr(z[p],2)}")
                for p in range(4):
                    e(f"v_pk_fma_f32 {vr(t[p],2)}, {vr(t[p],2)}, {KK}, {KK} op_sel:[0,1,0] op_sel_hi:[1,1,0]")
                for p in range(4):
                    e(f"v_pk_mul_f32 {vr(t[p],2)}, {vr(t[p],2)}, {vr(z[p],2)}")
                for p in range(4):
                    e(f"v_exp_f32 v{t[p]}, v{t[p]}\nv_exp_f32 v{t[p]+1}, v{t[p]+1}")
                for p in range(4):
                    e(f"v_pk_fma_f32 {vr(t[p],2)}, {vr(t[p],2)}, {SS}, {SS}")
                for p in range(4):
                    e(f"v_rcp_f32 v{t[p]}, v{t[p]}\nv_rcp_f32 v{t[p]+1}, v{t[p]+1}")
                for p in range(4):
                    e(f"v_pk_mul_f32 {vr(t[p],2)}, {vr(t[p],2)}, {vr(z[p],2)}")
                o = acc + 8 * u
                for p in range(4):
                    e(f"v_cvt_pk_bf16_f32 v{o+p}, v{t[p]}, v{t[p]+1}")
                pend.append((f"buffer_store_dwordx4 {vr(o,4)}, v60, {srd(SRD_WS)}, s{100+ft} offen offset:{st*2048+u*512} sc1", "hst"))
                if g in H_STORE_AFTER:
                    emit_fill(k, pend.pop(0))
                g += 1
    return pend


H_STORE_AFTER = (0, 2, 3, 5, 7)


CV_H, CV_HS, CV_X, CV_XS, CV_CH = 0, 4416, 17664, 6272, 30208
CV_A, CV_B, CV_ACC = 128, 160, 176
CV_XR = 32


def conv_h_setup(k):
    k.e(f"""s_lshl_b32 s6, s{S_WAVE}, 2
          v_lshlrev_b32 v202, 2, v1
          v_add_u32 v202, s6, v202
          v_subrev_u32 v202, 252, v202
          v_add_u32 v203, s6, v{V_L16}
          v_add_u32 v203, 4, v203
          s_mul_i32 s90, s{S_WAVE}, {CV_HS}""")


def conv_h_items(lc):
    it = [(f"s_add_u32 s6, s88, {lc}", None), ("s_lshl_b32 s6, s6, 12", None),
          (f"s_add_u32 s{SRD_T0}, s{P_SSMK}, s6", None), (f"s_addc_u32 s{SRD_T0+1}, s{P_SSMK+1}, 0", None),
          (f"s_and_b32 s{SRD_T0+1}, s{SRD_T0+1}, 0xffff", None), (f"s_mov_b32 s{SRD_T0+2}, 4096", None),
          (f"s_mov_b32 s{SRD_T0+3}, 0x20000", None),
          (f"s_add_u32 m0, s90, {LDS_CV + lc*CV_CH + CV_H}", None), ("s_nop 0", None),
          (f"buffer_load_dword v202, {srd(SRD_T0)}, 0 offen{NT('h')} lds", "H"),
          (f"s_add_u32 m0, s90, {LDS_CV + lc*CV_CH + CV_H + 256}", None), ("s_nop 0", None)]
    for j in range(4):
        it.append((f"buffer_load_dwordx4 v203, {srd(SRD_T0)}, 0 offen offset:{1024*j}{NT('h')} lds", "H"))
    return it


def conv_x_items():
    it = [("v_lshlrev_b32 v4, 4, v0", None)]
    for lc in range(3):
        it += [(f"s_add_u32 s6, s88, {lc}", None), ("s_lshl_b32 s6, s6, 12", None), (f"s_add_u32 s6, s6, {WS_XR}", None),
               (f"s_add_u32 s{SRD_T1}, s{P_WS}, s6", None), (f"s_addc_u32 s{SRD_T1+1}, s{P_WS+1}, 0", None),
               (f"s_and_b32 s{SRD_T1+1}, s{SRD_T1+1}, 0xffff", None), (f"s_mov_b32 s{SRD_T1+2}, 4096", None),
               (f"s_mov_b32 s{SRD_T1+3}, 0x20000", None),
               (f"buffer_load_dwordx4 {vr(CV_XR+6*lc,4)}, v4, {srd(SRD_T1)}, 0 offen", "X"),
               (f"buffer_load_dword v{CV_XR+6*lc+4}, v4, {srd(SRD_T1)}, 0 offen offset:16", "X")]
    return it


def conv_zero_tails(k):
    e = k.e
    e(f"""v_lshlrev_b32 v5, 4, v0
          v_add_u32 v5, {LDS_CV + CV_X + 16*272}, v5
          v_add_u32 v7, {2*CV_CH}, v5
          v_mov_b32 v12, 0
          v_mov_b32 v13, 0
          v_mov_b32 v14, 0
          v_mov_b32 v15, 0
          v_cmp_gt_u32 vcc, 119, v0
          s_and_saveexec_b64 s[6:7], vcc""")
    for lc in range(3):
        va, o = ("v5", lc * CV_CH) if lc < 2 else ("v7", 0)
        e(f"ds_write_b128 {va}, v[12:15] offset:{o}")
        e(f"ds_write_b128 {va}, v[12:15] offset:{o+CV_XS}")
    e("s_mov_b64 exec, s[6:7]")


def conv_xwrite(k):
    e = k.e
    e(f"""v_lshrrev_b32 v4, 4, v0
          v_mul_u32_u24 v4, 272, v4
          v_and_b32 v5, 15, v0
          v_lshl_add_u32 v4, v5, 4, v4
          v_add_u32 v4, {LDS_CV + CV_X}, v4
          v_add_u32 v6, {2*CV_CH}, v4""")
    k.vq.need("X")
    for lc in range(3):
        x = CV_XR + 6 * lc
        va, o = ("v4", lc * CV_CH) if lc < 2 else ("v6", 0)
        e(f"ds_write_b128 {va}, {vr(x,4)} offset:{o+CV_XS}")
        for d in range(4):
            e(f"v_alignbit_b32 v{12+d}, v{x+d+1}, v{x+d}, 16")
        e(f"ds_write_b128 {va}, v[12:15] offset:{o}")


def conv_lane_setup(k):
    k.e(f"""s_lshl_b32 s6, s89, 2
          s_add_u32 s6, s6, s{S_WAVE}
          s_lshl_b32 s7, s6, 1
          s_lshr_b32 s85, 6436, s7
          s_and_b32 s85, s85, 3
          s_lshr_b32 s86, 55, s6
          s_and_b32 s86, s86, 1
          s_lshr_b32 s87, 61311, s7
          s_and_b32 s87, s87, 3
          v_and_b32 v2, 3, v1
          v_mul_u32_u24 v2, {CV_HS}, v2
          v_bfe_u32 v3, v1, 2, 2
          v_lshrrev_b32 v18, 4, v1
          v_add_u32 v3, v3, v18
          v_lshl_add_u32 v16, v3, 4, v2
          v_and_b32 v2, 1, v1
          v_mul_u32_u24 v2, {CV_XS}, v2
          v_bfe_u32 v3, v1, 1, 3
          s_lshl_b32 s6, s86, 3
          s_sub_u32 s6, 15, s6
          v_sub_u32 v5, s6, v3
          v_mul_u32_u24 v5, 272, v5
          v_add_u32 v2, v2, v5
          v_lshl_add_u32 v17, v18, 4, v2
          s_lshl_b32 s6, s86, 3
          v_add_u32 v3, s6, v3
          v_lshlrev_b32 v3, 8, v3
          v_and_b32 v2, 1, v1
          v_lshl_or_b32 v2, v18, 1, v2
          v_lshl_or_b32 v11, v2, 4, v3""")


def conv_unit_addr(k, t0):
    k.e(f"""s_mul_i32 s6, s85, {CV_CH}
          s_add_u32 s6, s6, {LDS_CV - 64*t0}
          v_add_u32 v8, s6, v16
          s_add_u32 s6, s6, {CV_X + 64*t0 - (t0>>2)*272}
          v_add_u32 v9, s6, v17
          v_lshlrev_b32 v10, 5, v18
          v_sub_u32 v10, v9, v10
          v_add_u32 v10, {(t0>>2)*272}, v10
          s_add_u32 s91, s88, s85
          s_lshl_b32 s6, s91, 1
          s_and_b32 s6, s6, 0xfffffffc
          s_load_dword s92, s[{P_SSMD}:{P_SSMD+1}], s6""")


def conv_prime(k, t0):
    e = k.e
    for n in range(8):
        e(f"ds_read_b128 {vr(CV_A+4*((t0+n)&7),4)}, v8 offset:{64*(t0+n)}")
    for t in range(t0, t0 + 3):
        e(f"ds_read_b128 {vr(CV_B+4*(t&3),4)}, v9 offset:{(t>>2)*272+(t&3)*64}")
    for i in range(16):
        e(f"v_mov_b32 v{CV_ACC+i}, 0")
    e("s_waitcnt lgkmcnt(0)")


def conv_steps(k, lq, t0, t1, hooks, fills):
    e = k.e
    for t in range(t0, t1):
        if t in hooks:
            hooks[t]()
        tb = t + 3
        boff = (tb >> 2) * 272 + (tb & 3) * 64
        lq.need(f"A{t+3}", f"B{t}")
        fill = list(fills.get(t, []))
        for p in range(4):
            if t + p > 2:
                e(f"v_mfma_f32_16x16x32_bf16 {vr(CV_ACC+4*p,4)}, {vr(CV_A+4*((t+p)&7),4)}, {vr(CV_B+4*(t&3),4)}, {vr(CV_ACC+4*p,4)}")
            if p == 0:
                e(f"ds_read_b128 {vr(CV_A+4*(t&7),4)}, v8 offset:{64*(t+8)}")
                lq.issue(f"A{t+8}")
            if p == 1:
                e(f"ds_read_b128 {vr(CV_B+4*(tb&3),4)}, v9 offset:{boff}")
                lq.issue(f"B{tb}")
            if p >= 2 and fill:
                emit_fill(k, fill.pop(0))
        while fill:
            emit_fill(k, fill.pop(0))


def conv_epilogue(k):
    e = k.e
    e("s_waitcnt lgkmcnt(0)")
    for p in range(4):
        e(f"ds_read_b128 {vr(CV_A+4*p,4)}, v10 offset:{48+64*(3-p)}")
    e(f"""s_and_b32 s6, s91, 1
          s_lshl_b32 s6, s6, 4
          s_lshr_b32 s92, s92, s6
          s_lshl_b32 s92, s92, 16
          s_lshl_b32 s6, s91, 12
          s_add_u32 s6, s6, {WS_Y2}
          s_nop 4
          s_waitcnt lgkmcnt(0)""")
    for p in range(4):
        for ci in range(4):
            e(f"v_lshlrev_b32 v{CV_A+4*p+3-ci}, 16, v{CV_A+4*p+3-ci}")
            e(f"v_fma_f32 v{CV_ACC+4*p+ci}, v{CV_A+4*p+3-ci}, s92, v{CV_ACC+4*p+ci}")
    for P in range(2):
        for h in range(2):
            a = CV_ACC + 4 * (2 * P + h)
            e(f"v_cvt_pk_bf16_f32 v{CV_B+4*P+2*h}, v{a}, v{a+1}")
            e(f"v_cvt_pk_bf16_f32 v{CV_B+4*P+2*h+1}, v{a+2}, v{a+3}")
        k.vm(f"buffer_store_dwordx4 {vr(CV_B+4*P,4)}, v11, {srd(SRD_WS)}, s6 offen offset:{128*P} sc1", "yst")


G2_H, G2_ACC, G2_WV = 64, 128, 208
G2_VH = 56
G2_RED, G2_Y = 0, 61440


def g2_wreg(t, j):
    return ar(t * 20 + j * 4, 4) if t < 12 else vr(G2_WV + (t - 12) * 20 + j * 4, 4)


def g2_w2_setup(k):
    k.e(f"""s_mul_i32 s6, s95, 54
          s_add_u32 s6, s6, s96
          s_mul_i32 s97, s6, 5120
          s_add_u32 s97, s97, {WS_W2F}
          s_add_u32 s98, s97, 4096""")


def g2_w2_items():
    out = []
    for t in range(14):
        for j in range(5):
            g = []
            if j == 4:
                g.append((f"buffer_load_dwordx4 {g2_wreg(t,j)}, v{V_L16}, {srd(SRD_WS)}, s98 offen", f"w{t}"))
                g.append(("s_add_u32 s97, s97, 5120", None))
                g.append(("s_add_u32 s98, s98, 5120", None))
            else:
                g.append((f"buffer_load_dwordx4 {g2_wreg(t,j)}, v{V_L16}, {srd(SRD_WS)}, s97 offen offset:{1024*j}", f"w{t}"))
            out.append(g)
    return out


def g2_hsetup(k):
    e = k.e
    e(f"""s_mul_i32 s6, s94, 54
          s_add_u32 s6, s6, s96
          s_lshl_b32 s99, s6, 12
          s_add_u32 s99, s99, {WS_HF}""")
    for u in range(4):
        e(f"""s_add_u32 s6, s{S_WAVE}, {u}
              s_and_b32 s6, s6, 3
              s_lshl_b32 s6, s6, 10
              v_add_u32 v{G2_VH+u}, s6, v{V_L16}""")


def g2_hitems(t):
    out = [(f"buffer_load_dwordx4 {vr(G2_H+16*(t&3)+4*u,4)}, v{G2_VH+u}, {srd(SRD_WS)}, s99 offen", f"h{t}") for u in range(4)]
    out.append(("s_add_u32 s99, s99, 4096", None))
    return out


def g2_main(k, hooks):
    e = k.e
    skip = e.lab("g2skip")
    for i in range(80):
        e(f"v_mov_b32 v{G2_ACC+i}, 0")
    for t in range(14):
        if t in hooks:
            hooks[t]()
        if t == 13:
            e(f"""s_cmp_ge_u32 s{S_WAVE}, 2
                  s_cbranch_scc1 {skip}""")
        k.vq.need(f"h{t}", f"w{t}")
        fill = g2_hitems(t + 3) if t + 3 < 14 else []
        m = 0
        for j in range(5):
            for u in range(4):
                acc = G2_ACC + (u * 5 + j) * 4
                e(f"v_mfma_f32_16x16x32_bf16 {vr(acc,4)}, {g2_wreg(t,j)}, {vr(G2_H+16*(t&3)+4*u,4)}, {vr(acc,4)}")
                m += 1
                if fill and m % 4 == 1:
                    emit_fill(k, fill.pop(0))
    e(f"{skip}:")


def g2_final_loads(k):
    e = k.e
    mk_srd(e, SRD_T0, P_B2, D * 2)
    e(f"""v_and_b32 v2, 15, v1
          v_lshrrev_b32 v3, 4, v1
          v_lshrrev_b32 v4, 3, v2
          v_lshlrev_b32 v4, 3, v4
          v_and_b32 v5, 3, v2
          v_lshl_or_b32 v4, v5, 1, v4
          v_bfe_u32 v5, v2, 2, 1
          v_or_b32 v4, v4, v5
          s_lshl_b32 s6, s94, 6
          s_lshl_b32 s7, s{S_WAVE}, 4
          s_add_u32 s6, s6, s7
          v_add_u32 v4, s6, v4
          v_lshlrev_b32 v5, 4, v4
          v_mul_u32_u24 v4, 1280, v4
          v_mul_u32_u24 v3, 40, v3
          s_mul_i32 s6, s95, 160
          v_add_u32 v3, s6, v3
          v_add_u32 v60, v4, v3
          s_mov_b32 s7, {WS_STATF}""")
    k.vm(f"""buffer_load_dwordx4 v[8:11], v60, {srd(SRD_X)}, 0 offen
          buffer_load_dwordx4 v[12:15], v60, {srd(SRD_X)}, 0 offen offset:16
          buffer_load_dwordx2 v[16:17], v60, {srd(SRD_X)}, 0 offen offset:32
          buffer_load_dwordx4 v[20:23], v3, {srd(SRD_T0)}, 0 offen
          buffer_load_dwordx4 v[24:27], v3, {srd(SRD_T0)}, 0 offen offset:16
          buffer_load_dwordx2 v[28:29], v3, {srd(SRD_T0)}, 0 offen offset:32
          buffer_load_dwordx4 v[32:35], v5, {srd(SRD_WS)}, s7 offen""", "fin")


def g2_y2dma(k):
    e = k.e
    skip = e.lab("y2skip")
    e(f"""v_lshrrev_b32 v2, 3, v1
          v_and_b32 v3, 7, v1
          v_lshlrev_b32 v3, 4, v3
          v_lshl_add_u32 v61, v2, 12, v3
          s_mul_i32 s6, s95, 80
          s_lshl_b32 s7, s{S_WAVE}, 3
          s_add_u32 s6, s6, s7
          s_lshl_b32 s6, s6, 12
          s_lshl_b32 s7, s94, 7
          s_add_u32 s6, s6, s7
          s_add_u32 s6, s6, {WS_Y2}
          s_lshl_b32 s7, s{S_WAVE}, 10
          s_add_u32 s7, s7, {G2_Y}""")
    for n in range(3):
        if n == 2:
            e(f"""s_cmp_ge_u32 s{S_WAVE}, 2
                  s_cbranch_scc1 {skip}""")
        e(f"""s_mov_b32 m0, s7
              s_add_u32 s7, s7, 4096
              buffer_load_dwordx4 v61, {srd(SRD_WS)}, s6 offen lds
              s_add_u32 s6, s6, {32*4096}""")
        if n < 2:
            k.vq.issue("y2d")
    e(f"{skip}:")


def g2_reduce_final(k):
    e = k.e
    e(f"""s_mul_i32 s6, s{S_WAVE}, 15360
          s_add_u32 s6, s6, {G2_RED}
          v_add_u32 v62, s6, v{V_L16}""")
    for u in range(1, 4):
        e(f"""s_add_u32 s6, s{S_WAVE}, {u}
              s_and_b32 s6, s6, 3
              s_mul_i32 s6, s6, 15360
              s_add_u32 s6, s6, {G2_RED + (u-1)*5120}
              v_add_u32 v{G2_VH+u}, s6, v{V_L16}""")
    e("s_nop 4")
    for u in range(1, 4):
        for j in range(5):
            e(f"ds_write_b128 v{G2_VH+u}, {vr(G2_ACC+(u*5+j)*4,4)} offset:{1024*j}")
    e(f"""v_lshrrev_b32 v3, 4, v1
          v_mul_u32_u24 v3, 20, v3
          v_bfe_u32 v4, v1, 2, 2
          v_add_u32 v3, v3, v4
          v_lshlrev_b32 v3, 7, v3
          v_and_b32 v4, 3, v1
          v_lshl_add_u32 v3, v4, 4, v3
          s_and_b32 s6, s{S_WAVE}, 1
          s_lshl_b32 s6, s6, 6
          s_lshr_b32 s7, s{S_WAVE}, 1
          s_lshl_b32 s7, s7, 3
          s_add_u32 s6, s6, s7
          s_add_u32 s6, s6, {G2_Y}
          v_add_u32 v63, s6, v3
          s_waitcnt vmcnt(0) lgkmcnt(0)
          s_barrier""")
    k.vq.q = []
    k.stamp("g2 reduce barrier")
    R = G2_H
    for u in range(3):
        for j in range(5):
            e(f"ds_read_b128 {vr(R+(u*5+j)*4,4)}, v62 offset:{u*5120+1024*j}")
    for j in range(5):
        e(f"ds_read_b64_tr_b16 {vr(36+2*j,2)}, v63 offset:{512*j}")
    e(f"""v_mul_f32 v46, v32, v33
          v_sub_f32 v46, 0, v46
          v_mov_b32 v47, v33
          v_mov_b32 v48, {-1.4426950408889634!r}
          v_mov_b32 v49, 1.0""")
    for u in range(3):
        e(f"s_waitcnt lgkmcnt({min(15, 5 + 5*(2-u))})")
        for j in range(5):
            for h in range(2):
                a = G2_ACC + j * 4 + 2 * h
                e(f"v_pk_add_f32 {vr(a,2)}, {vr(a,2)}, {vr(R+(u*5+j)*4+2*h,2)}")
    e("s_waitcnt lgkmcnt(0)")
    X, B2, Y, T, O = 8, 20, 36, 64, 100
    C = "v[46:47]"
    for k0 in range(0, 10, 5):
        ks = range(k0, k0 + 5)
        a = {q: G2_ACC + 2 * q for q in ks}
        t = {q: T + 2 * (q - k0) for q in ks}
        xf = {q: T + 10 + 2 * (q - k0) for q in ks}
        yf = {q: T + 20 + 2 * (q - k0) for q in ks}
        for q in ks:
            e(f"v_lshlrev_b32 v{t[q]}, 16, v{B2+q}\nv_and_b32 v{t[q]+1}, 0xffff0000, v{B2+q}")
        for q in ks:
            e(f"v_pk_add_f32 {vr(a[q],2)}, {vr(a[q],2)}, {vr(t[q],2)}")
        for q in ks:
            e(f"v_pk_mul_f32 {vr(t[q],2)}, {vr(a[q],2)}, v[48:49] op_sel_hi:[1,0]")
        for q in ks:
            e(f"v_exp_f32 v{t[q]}, v{t[q]}\nv_exp_f32 v{t[q]+1}, v{t[q]+1}")
        for q in ks:
            e(f"v_lshlrev_b32 v{xf[q]}, 16, v{X+q}\nv_and_b32 v{xf[q]+1}, 0xffff0000, v{X+q}")
        for q in ks:
            e(f"v_pk_add_f32 {vr(t[q],2)}, {vr(t[q],2)}, v[48:49] op_sel:[0,1] op_sel_hi:[1,1]")
        for q in ks:
            e(f"v_rcp_f32 v{t[q]}, v{t[q]}\nv_rcp_f32 v{t[q]+1}, v{t[q]+1}")
        for q in ks:
            e(f"v_lshlrev_b32 v{yf[q]}, 16, v{Y+q}\nv_and_b32 v{yf[q]+1}, 0xffff0000, v{Y+q}")
        for q in ks:
            e(f"v_pk_mul_f32 {vr(t[q],2)}, {vr(t[q],2)}, {vr(a[q],2)}")
        for q in ks:
            e(f"v_pk_fma_f32 {vr(a[q],2)}, {vr(xf[q],2)}, {C}, {C} op_sel:[0,1,0] op_sel_hi:[1,1,0]")
        for q in ks:
            e(f"v_pk_mul_f32 {vr(a[q],2)}, {vr(a[q],2)}, {vr(yf[q],2)}")
        for q in ks:
            e(f"v_pk_fma_f32 {vr(a[q],2)}, {vr(a[q],2)}, {vr(t[q],2)}, {vr(xf[q],2)}")
        for q in ks:
            e(f"v_cvt_pk_bf16_f32 v{O+q}, v{a[q]}, v{a[q]+1}")
    e(f"""buffer_store_dwordx4 {vr(O,4)}, v60, {srd(SRD_OUT)}, 0 offen
          buffer_store_dwordx4 {vr(O+4,4)}, v60, {srd(SRD_OUT)}, 0 offen offset:16
          buffer_store_dwordx2 {vr(O+8,2)}, v60, {srd(SRD_OUT)}, 0 offen offset:32""")


SP_ST = 0
SP_CSX = 130


def sp_stats_loads(k):
    e = k.e
    e(f"""s_lshl_b32 s6, s73, 6
          s_lshl_b32 s7, s{S_WAVE}, 4
          s_add_u32 s74, s6, s7
          v_and_b32 v2, 15, v1
          v_lshrrev_b32 v3, 4, v1
          v_add_u32 v4, s74, v2
          v_mul_u32_u24 v4, 1280, v4
          v_lshl_add_u32 v211, v3, 4, v4""")
    return [(f"buffer_load_dwordx4 {ar(SP_ST+4*t,4)}, v211, {srd(SRD_X)}, 0 offen offset:{64*t}{NT('st')}", f"st{t}") for t in range(20)]


def sp_stats(k, fills=()):
    e = k.e
    B = 214
    fills = list(fills)
    for i in range(4):
        e(f"v_mov_b32 v{B+i}, 0x3f803f80")
    for i in range(8):
        e(f"v_mov_b32 v{B+4+i}, 0")
    for t in range(20):
        k.vq.need(f"st{t}")
        e(f"v_mfma_f32_16x16x32_bf16 {vr(B+4,4)}, {ar(SP_ST+4*t,4)}, {ar(SP_ST+4*t,4)}, {vr(B+4,4)}")
        e(f"v_mfma_f32_16x16x32_bf16 {vr(B+8,4)}, {ar(SP_ST+4*t,4)}, {vr(B,4)}, {vr(B+8,4)}")
        if fills:
            emit_fill(k, fills.pop(0))
    while fills:
        emit_fill(k, fills.pop(0))
    a, b = B + 4, B + 8
    e(f"""v_and_b32 v5, 1, v1
          v_cmp_eq_u32 vcc, 1, v5
          v_and_b32 v5, 2, v1
          v_cmp_eq_u32 s[6:7], 2, v5
          s_nop 7
          v_cndmask_b32 v2, v{a}, v{a+1}, vcc
          v_cndmask_b32 v3, v{a+2}, v{a+3}, vcc
          v_cndmask_b32 v4, v{b}, v{b+1}, vcc
          v_cndmask_b32 v5, v{b+2}, v{b+3}, vcc
          v_cndmask_b32 v2, v2, v3, s[6:7]
          v_cndmask_b32 v3, v4, v5, s[6:7]
          v_mul_f32 v{B}, {1.0/640.0!r}, v3
          v_mul_f32 v2, {1.0/640.0!r}, v2
          v_fma_f32 v2, -v{B}, v{B}, v2
          v_max_f32 v2, 0, v2
          v_add_f32 v2, 0x3727c5ac, v2
          v_sqrt_f32 v{B+2}, v2
          s_nop 0
          v_rcp_f32 v{B+1}, v{B+2}
          v_mov_b32 v{B+3}, 0
          v_sub_f32 v3, 0, v{B}
          v_cvt_pk_bf16_f32 v4, v{B+2}, v3
          v_lshlrev_b32 v5, 16, v4
          v_and_b32 v6, 0xffff0000, v4
          v_sub_f32 v5, v{B+2}, v5
          v_sub_f32 v6, v3, v6
          v_cvt_pk_bf16_f32 v5, v5, v6
          s_mov_b32 s6, 0x05040100
          s_mov_b32 s7, 0x07060302
          v_perm_b32 v{B+4}, v5, v4, s6
          v_perm_b32 v{B+5}, v5, v4, s7
          v_mov_b32 v{B+6}, v{B+5}
          v_mov_b32 v{B+7}, 0
          v_lshrrev_b32 v3, 4, v1
          v_and_b32 v5, 3, v1
          v_lshl_add_u32 v5, v3, 2, v5
          v_add_u32 v5, s74, v5
          v_lshlrev_b32 v5, 4, v5
          s_mov_b32 s6, {WS_STAT16}
          s_mov_b32 s7, {WS_STATF}
          s_mov_b32 exec_lo, 0x00f0000f
          s_mov_b32 exec_hi, 0xf0000f00""")
    k.vm(f"""buffer_store_dwordx4 {vr(B+4,4)}, v5, {srd(SRD_WS)}, s6 offen sc1
          buffer_store_dwordx4 {vr(B,4)}, v5, {srd(SRD_WS)}, s7 offen sc1""", "stst")
    e("s_mov_b64 exec, -1")


def spare_path(k):
    e = k.e
    save = k.vq
    k.vq = Q(e, "vmcnt", 63)
    e(f"""s_lshl_b32 s73, s{S_XCD}, 2
          s_add_u32 s73, s73, s{S_SLOT}
          s_sub_u32 s73, s73, 28""")
    p0_loads(k)
    ids(k)
    poll_addrs(k)
    p0_compute(k, lambda: arrive(k), fills=sp_stats_loads(k))
    k.stamp("spare: p0 done")
    sp_stats(k)
    k.stamp("spare: stats done")
    k.vq.drain()
    e("s_barrier")
    k.set_flag(FL_KV)
    k.set_flag(FL_ST)
    k.stamp("spare: flags set")
    k.poll_block(V_PCNT, "cnt", dbg=True)
    e(f"""v_mov_b32 v60, {OOB}
          s_mov_b32 s100, 0
          s_mov_b32 s101, 0""")
    conv_h_setup(k)
    for lc in range(3):
        for it in conv_h_items(lc):
            emit_fill(k, it)
    k.poll_block(V_PA1, "fl1")
    e("s_barrier")
    g2_w2_setup(k)
    w2 = g2_w2_items()
    for g in w2[:N_W2_EARLY]:
        for it in g:
            emit_fill(k, it)
    k.poll_block(V_PA2, "fl2")
    e("s_barrier")
    for it in conv_x_items():
        emit_fill(k, it)
    conv_zero_tails(k)
    conv_xwrite(k)
    k.stamp("spare: ready")
    e("s_waitcnt vmcnt(0)")
    e("s_branch L_conv")
    k.vq = save


N_W2_EARLY = 24


def flat(groups):
    return [it for g in groups for it in g]


def build():
    k = K()
    e = k.e
    prologue(k)
    e(f"""s_cmp_ge_u32 s{S_SLOT}, 28
          s_cbranch_scc1 L_spare""")
    p0_loads(k)
    ids(k)
    g1_setup_dma(k)
    w2i = w2u_dma_items(k)
    g1_setup_rd(k)
    poll_addrs(k)
    if OPT["pf"]:
        pf_setup(k)
        for it in pf_x_items() + pf_items(list(range(OPT["pf0"]))):
            emit_fill(k, it)
    stores = p0_compute(k, lambda: arrive(k), fills=w2i + g1_dma(0) + g1_dma(1), w2u=True)
    for i in range(64):
        e(f"v_mov_b32 v{G1_ACC+i}, 0")
    g1_cs_init(k)
    e("s_waitcnt lgkmcnt(0)")
    k.stamp("p0 done")
    w2 = g2_w2_items()
    pre, post, fills = {}, {}, {}
    d2, d3 = g1_dma(2), g1_dma(3)
    fills[(0, -1)] = d2[0:6]
    fills[(0, 0)] = d2[6:12]
    fills[(0, 1)] = d3[0:6]
    fills[(0, 2)] = d3[6:12]
    for i, it in enumerate(stores):
        fills[(1 + i, 0)] = [it]
    if OPT["pf"]:
        for q in range(OPT["pf0"], 10):
            key = (q - OPT["pf0"], 2)
            fills[key] = fills.get(key, []) + pf_items([q])
    post[2] = lambda: k.poll_issue(V_PCNT, "cnt", dbg=True)

    pre[5] = lambda: k.poll_check(V_PCNT, "cnt", dbg=True)
    post[6] = lambda: k.poll_issue(V_PST, "pst")

    def pre8():
        k.vq.need("kvst")
        k.poll_check(V_PST, "pst")
    pre[8] = pre8

    def post8():
        k.set_flag(FL_KV)
        g1_epi_loads(k)
    post[8] = post8
    post[7] = lambda: conv_h_setup(k)
    fills[(8, 0)] = conv_h_items(0)
    fills[(8, 2)] = conv_h_items(1)
    fills[(9, 0)] = conv_h_items(2)

    def post9():
        g2_w2_setup(k)
        k.poll_issue(V_PA1, "fl1")
        k.poll_issue(V_PA2, "fl2", dst=V_POLL2)
    post[9] = post9
    g1_main(k, pre, post, fills)
    k.stamp("gemm1 done")
    hooks = {}
    wq = list(w2[:N_W2_EARLY])

    def w2some(n):
        def f():
            for _ in range(n):
                if wq:
                    for it in wq.pop(0):
                        emit_fill(k, it)
        return f
    for g in range(2, 8):
        hooks[g] = w2some(4)

    def h1():
        k.poll_check(V_PA1, "fl1")
        k.poll_check(V_PA2, "fl2", dst=V_POLL2)
        e("s_barrier")
        for it in conv_x_items():
            emit_fill(k, it)
    hooks[1] = h1

    def h6():
        conv_zero_tails(k)
        conv_xwrite(k)
        w2some(4)()
    hooks[6] = h6
    hpend = g1_epilogue(k, hooks)
    assert not wq
    k.vq.need("H")
    k.stamp("gelu done")
    e("L_conv:")
    conv_lane_setup(k)
    conv_unit_addr(k, 0)
    e("s_waitcnt lgkmcnt(0)\ns_barrier")
    conv_prime(k, 0)
    k.stamp("conv start")
    lq = Q(e, "lgkmcnt", 15)
    rest = w2[N_W2_EARLY:]
    nA = len(rest) // 2
    fillsA = {}
    for i, g in enumerate(rest[:nA]):
        fillsA.setdefault(1 + (i * 30) // nA, []).extend(g)
    for i, it in enumerate(hpend):
        fillsA.setdefault(3 + 6 * i, []).insert(0, it)

    def hflag():
        k.vq.need("hst")
        e("s_barrier")
        k.set_flag(FL_H)
    conv_steps(k, lq, 0, 32, {}, fillsA)
    two, halfb = e.lab("two"), e.lab("halfb")
    e(f"""s_cmp_eq_u32 s86, 0
          s_cbranch_scc1 {two}
          {halfb}:""")
    q_at_branch = list(k.vq.q)
    fillsB = {}
    for i, g in enumerate(rest[nA:]):
        fillsB.setdefault(32 + (i * 22) // (len(rest) - nA), []).extend(g)

    def hpoll():
        k.poll_issue(V_PA3, "fl3")

    def hcheck():
        k.poll_check(V_PA3, "fl3")
        g2_hsetup(k)
    for t in range(3):
        fillsB.setdefault(55 + 3 * t, []).extend(g2_hitems(t))
    conv_steps(k, lq, 32, 64, {36: hflag, 46: hpoll, 54: hcheck}, fillsB)
    conv_epilogue(k)
    e("L_gemm2:")
    q_join = list(k.vq.q)
    main_e = k.e
    sub = Emit(); sub.n = main_e.n + 1000
    k.e = sub; k.vq.e = sub
    save_q = k.vq.q
    k.vq.q = list(q_at_branch)
    sub(f"{two}:")
    conv_epilogue(k)
    sub(f"""s_cmp_eq_u32 s87, 3
           s_cselect_b32 s85, s85, s87
           s_cselect_b64 vcc, -1, 0
           v_mov_b32 v2, {OOB}
           v_cndmask_b32 v11, v11, v2, vcc""")
    conv_unit_addr(k, 32)
    conv_prime(k, 32)
    sub(f"s_branch {halfb}")
    out_of_line = sub.text()
    k.e = main_e; k.vq.e = main_e
    k.vq.q = q_join
    k.stamp("conv done")
    hooks = {}
    hooks[0] = lambda: g2_final_loads(k)

    def yflag():
        k.vq.need("yst")
        e("s_barrier")
        k.set_flag(FL_Y)
    hooks[3] = yflag
    hooks[6] = lambda: k.poll_issue(V_PA4, "fl4")

    def ycheck():
        k.poll_check(V_PA4, "fl4")
        g2_y2dma(k)
    hooks[9] = ycheck
    g2_main(k, hooks)
    k.stamp("gemm2 done")
    g2_reduce_final(k)
    k.stamp("end")
    if OPT["stamps"] == 9:
        sk = e.lab("nost")
        e(f"""s_cmp_lg_u32 s{S_WAVE}, 0
              s_cbranch_scc1 {sk}
              v_lshlrev_b32 v2, 2, v1
              s_mov_b32 exec_lo, 0xfefe
              s_mov_b32 exec_hi, 0
              buffer_atomic_umax v{V_STAMP}, v2, {srd(SRD_DBG)}, 0 offen sc1
              {sk}:""")
    elif OPT["stamps"]:
        e(f"s_memrealtime s[44:45]\ns_waitcnt lgkmcnt(0)\nv_writelane_b32 v{V_STAMP}, s44, 63")
        sk = e.lab("nost")
        e(f"""s_cmp_lg_u32 s{S_WAVE}, 0
              s_cbranch_scc1 {sk}
              s_lshl_b32 s6, s2, 8
              s_add_u32 s6, s6, {WS_STAMP}
              v_lshlrev_b32 v2, 2, v1
              buffer_store_dword v{V_STAMP}, v2, {srd(SRD_WS)}, s6 offen
              {sk}:""")
    e("L_end:\ns_endpgm")
    e(out_of_line)
    e("L_spare:")
    k.vq.q = []
    spare_path(k)
    for t in k.tail:
        e(t)
    return k.e.text()


def main():
    out = sys.argv[1]
    for a in sys.argv[2:]:
        n, v = a.split("=")
        OPT[n] = int(v)
    body = build()
    label = NAME + "_kernel"
    txt = f"; @launch grid=(256,1,1) block=(256,1,1) lds=163840\n"
    txt += '.amdgcn_target "amdgcn-amd-amdhsa--gfx950"\n.text\n'
    txt += f".globl {label}\n.p2align 8\n.type {label},@function\n{label}:\n" + body
    txt += f""".section .rodata,"a"
.p2align 6
.amdhsa_kernel {label}
  .amdhsa_next_free_vgpr 512
  .amdhsa_next_free_sgpr 102
  .amdhsa_accum_offset 256
  .amdhsa_group_segment_fixed_size 0
  .amdhsa_kernarg_size 112
  .amdhsa_user_sgpr_count 2
  .amdhsa_user_sgpr_kernarg_segment_ptr 1
  .amdhsa_system_sgpr_workgroup_id_x 1
.end_amdhsa_kernel
"""
    open(out, "w").write(txt)
    open(out + ".stamps", "w").write(",".join(NAMES))


if __name__ == "__main__":
    main()
```
